```python
import torch

def _softmax(x, axis=-1):
    return torch.softmax(x, dim=axis)
def _gelu(x):
    return torch.nn.functional.gelu(x, approximate="tanh")
def _silu(x):
    return torch.nn.functional.silu(x)
def _sigmoid(x):
    return torch.sigmoid(x)
def _layernorm(x, axis=-1, eps=1e-5):
    m = x.mean(dim=axis, keepdim=True)
    v = x.var(dim=axis, keepdim=True, unbiased=False)
    return (x - m) / torch.sqrt(v + eps)
def _scatter_add(tgt, idx, src, axis=0):
    return tgt.clone().index_add_(axis, idx, src)
def _segment_sum(src, seg, n):
    out = torch.zeros((n,) + src.shape[1:], dtype=src.dtype)
    return out.index_add_(0, seg, src)
def _pad(x, pw):
    flat = tuple(v for pair in reversed(pw) for v in pair)
    return torch.nn.functional.pad(x, flat)

kernel_name = 'standalone__linear_kernel_rfa__decode'

def setup_inputs():

    _w = (lambda a: (lambda t: t.to(torch.bfloat16) if t.is_floating_point() else t)(torch.as_tensor(a)))
    B, H, Sq, Sk, D, M = 4, 32, 1, 8192, 128, 64
    return {
        "q": _w((lambda *s: torch.randn(*s, dtype=torch.bfloat16) * 0.4)(B, H, Sq, D)),
        "k": _w((lambda *s: torch.randn(*s, dtype=torch.bfloat16) * 1.6)(B, H, Sk, D)),
        "v": _w((lambda *s: torch.randn(*s, dtype=torch.bfloat16) * 1.6)(B, H, Sk, D)),
        "omega": _w((lambda *s: torch.randn(*s, dtype=torch.bfloat16) * 1.6)(M, D)),
    }

def reference(q, k, v, omega):
    d = q.shape[-1]
    m = omega.shape[0]
    scale = float(d) ** -0.25
    qs = q * scale
    ks = k * scale
    q_proj = torch.einsum("bhsd,md->bhsm", qs, omega)
    k_proj = torch.einsum("bhsd,md->bhsm", ks, omega)
    q_sq = 0.5 * torch.einsum("bhsd,bhsd->bhs", qs, qs)[..., None]
    k_sq = 0.5 * torch.einsum("bhsd,bhsd->bhs", ks, ks)[..., None]
    inv_sqrt_m = float(m) ** -0.5
    phi_q = torch.exp(q_proj - q_sq) * inv_sqrt_m + 1e-6
    phi_k = torch.exp(k_proj - k_sq) * inv_sqrt_m + 1e-6
    kv = torch.einsum("bhsm,bhsd->bhmd", phi_k, v)
    z  = torch.einsum("bhsm->bhm", phi_k)
    num = torch.einsum("bhqm,bhmd->bhqd", phi_q, kv)
    den = torch.einsum("bhqm,bhm->bhq", phi_q, z)[..., None] + 1e-6
    return num / den
```

```python
import struct, sys, subprocess, argparse

def f2u(x): return struct.unpack("<I", struct.pack("<f", x))[0]
def f32(x): return struct.unpack("<f", struct.pack("<f", x))[0]
SCALE = f32(128.0 ** -0.25)
LOG2E = 1.4426950408889634

HEADER = """; Kernarg layout for this problem (56 bytes, ptrs only, base s[0:1]):
"""
META = """
.amdgpu_metadata
---
amdhsa.version: [1, 2]
amdhsa.kernels:
  - .name: {name}
    .symbol: {name}.kd
    .kernarg_segment_size: 56
    .kernarg_segment_align: 8
    .group_segment_fixed_size: 0
    .private_segment_fixed_size: 0
    .wavefront_size: 64
    .sgpr_count: 102
    .vgpr_count: {vgpr}
    .max_flat_workgroup_size: {wg}
    .args:
      - {{.name: kernargs, .size: 56, .offset: 0, .value_kind: by_value}}
...
.end_amdgpu_metadata
"""

class G:
    def __init__(s): s.L = []
    def __call__(s, t):
        for line in t.split("\n"):
            line = line.strip()
            if line: s.L.append(("" if line.endswith(":") else "    ") + line)
    def text(s): return "\n".join(s.L) + "\n"

def vr(b, n=4): return f"v[{b}:{b+n-1}]"
def ar(b, n=4): return f"a[{b}:{b+n-1}]"

def gen(name="standalone__linear_kernel_rfa__decode_kernel", W=8, depth=4, mimic=True, pk=False,
        flags="nt", stamp=False, meta=False, nocompute=False):
    NWG = 256
    ROWS_WG = 4096
    TILES_WAVE = ROWS_WG // 16 // W
    assert TILES_WAVE % depth == 0
    A = G()
    sK, sV, sO, sQ = 8, 12, 16, 20
    s_wave, s_head, s_off, s_cnt = 3, 24, 25, 26
    s_out, s_dbg, s_ws = 28, 30, 32
    s_scale, s_c1, s_tmp, s_tmp2 = 34, 36, 38, 39
    s_t0, s_t1 = 40, 42
    v_lane = 0
    v_ko, v_vo = 1, 2
    v_one, v_nh, v_den, v_p0, v_p1 = 3, 4, 5, 6, 7
    v_sel = 8
    v_pq = 12
    v_c0 = 20
    v_acc = 24
    v_ksq = 28
    v_w = 32
    v_P = 36
    v_D = 44
    v_A = 44
    v_t = 60
    v_K = 64
    nv = v_K + depth * 16
    acc_off = (nv + 3) // 4 * 4
    a_om = 0
    a_V = 64
    na = a_V + depth * 16
    total = acc_off + na
    lds = W * 512 + 64

    A(f"s_cmp_ge_u32 s2, {NWG}")
    A("s_cbranch_scc1 L_done")
    A("s_load_dwordx8 s[4:11], s[0:1], 0")
    A(f"s_load_dwordx4 s[{s_out}:{s_out+3}], s[0:1], 32")
    A(f"s_load_dwordx2 s[{s_ws}:{s_ws+1}], s[0:1], 48")
    if stamp: A(f"s_memrealtime s[{s_t0}:{s_t0+1}]")
    A(f"v_lshrrev_b32 v{v_t}, 6, v0")
    A(f"v_and_b32 v{v_lane}, 63, v0")
    A(f"v_readfirstlane_b32 s{s_wave}, v{v_t}")
    A(f"v_and_b32 v{v_t+1}, 15, v{v_lane}")
    A(f"v_lshrrev_b32 v{v_t+2}, 4, v{v_lane}")
    A(f"v_lshlrev_b32 v{v_ko}, 8, v{v_t+1}")
    A(f"v_lshl_add_u32 v{v_ko}, v{v_t+2}, 4, v{v_ko}")
    A(f"v_lshlrev_b32 v{v_vo}, 10, v{v_t+2}")
    A(f"v_lshl_add_u32 v{v_vo}, v{v_t+1}, 4, v{v_vo}")
    A(f"v_lshlrev_b32 v{v_t+3}, 4, v{v_t+2}")
    A(f"s_lshr_b32 s{s_head}, s2, 1")
    A(f"s_lshl_b32 s{s_off}, s{s_wave}, 12")
    A(f"s_lshr_b32 s{s_tmp}, s2, 12")
    A(f"s_lshl_b32 s{s_tmp2}, s2, 20")
    A("s_waitcnt lgkmcnt(0)")
    A(f"""s_mov_b32 s{sQ}, s4
    s_and_b32 s{sQ+1}, s5, 0xffff
    s_mov_b32 s{sQ+2}, 32768
    s_mov_b32 s{sQ+3}, 0x20000
    s_mov_b32 s{sO}, s10
    s_and_b32 s{sO+1}, s11, 0xffff
    s_mov_b32 s{sO+2}, 16384
    s_mov_b32 s{sO+3}, 0x20000
    s_add_u32 s{sV}, s8, s{s_tmp2}
    s_addc_u32 s{sV+1}, s9, 0
    s_and_b32 s{sV+1}, s{sV+1}, 0xffff
    s_mov_b32 s{sV+2}, {ROWS_WG*256}
    s_mov_b32 s{sV+3}, 0x20000
    s_add_u32 s{sK}, s6, s{s_tmp2}
    s_addc_u32 s{sK+1}, s7, 0
    s_and_b32 s{sK+1}, s{sK+1}, 0xffff
    s_mov_b32 s{sK+2}, {ROWS_WG*256}
    s_mov_b32 s{sK+3}, 0x20000""")
    A(f"s_lshl_b32 s{s_tmp}, s{s_head}, 8")
    qreg = v_pq
    for t in range(4):
        A(f"buffer_load_dwordx4 {vr(qreg+4*t)}, v{v_t+3}, s[{sQ}:{sQ+3}], s{s_tmp} offen offset:{64*t}")
    for mt in range(4):
        if mt: A(f"s_mov_b32 s{s_tmp2}, {4096*mt}")
        so = f"s{s_tmp2}" if mt else "0"
        for t in range(4):
            A(f"buffer_load_dwordx4 {ar(a_om+16*mt+4*t)}, v{v_ko}, s[{sO}:{sO+3}], {so} offen offset:{64*t}")

    def issueK(st):
        for t in range(4):
            A(f"buffer_load_dwordx4 {vr(v_K+16*st+4*t)}, v{v_ko}, s[{sK}:{sK+3}], s{s_off} offen offset:{64*t} {flags}")
    def issueV(st):
        for r in range(4):
            A(f"buffer_load_dwordx4 {ar(a_V+16*st+4*r)}, v{v_vo}, s[{sV}:{sV+3}], s{s_off} offen offset:{256*r} {flags}")
    STEP = W * 4096
    for st in range(depth):
        issueK(st); issueV(st)
        A(f"s_add_u32 s{s_off}, s{s_off}, {STEP}")
    A(f"s_mov_b32 s{s_scale}, {hex(f2u(SCALE))}")
    A(f"s_mov_b32 s{s_scale+1}, {hex(f2u(SCALE))}")
    c1 = LOG2E if mimic else SCALE * LOG2E
    A(f"s_mov_b32 s{s_c1}, {hex(f2u(c1))}")
    A(f"s_mov_b32 s{s_c1+1}, {hex(f2u(c1))}")
    A(f"v_mov_b32 v{v_den}, 0")
    A(f"v_mov_b32 v{v_p0}, 0x0c0c0302")
    A(f"v_mov_b32 v{v_p1}, 0x03020c0c")
    for q in range(4):
        A(f"v_mov_b32 v{v_sel+q}, 0x0c0c0c0c")
        A(f"v_cmp_eq_u32 vcc, {2*q}, v{v_t+1}")
        A("s_nop 1")
        A(f"v_cndmask_b32 v{v_sel+q}, v{v_sel+q}, v{v_p0}, vcc")
        A(f"v_cmp_eq_u32 vcc, {2*q+1}, v{v_t+1}")
        A("s_nop 1")
        A(f"v_cndmask_b32 v{v_sel+q}, v{v_sel+q}, v{v_p1}, vcc")
    A(f"v_mov_b32 v{v_one}, 1.0")

    def scale_regs(base, n):
        for i in range(n):
            t = v_t + 2 * (i % 2)
            x = base + i
            A(f"v_lshlrev_b32 v{t}, 16, v{x}")
            A(f"v_and_b32 v{t+1}, 0xffff0000, v{x}")
            if pk:
                A(f"v_pk_mul_f32 {vr(t,2)}, {vr(t,2)}, s[{s_scale}:{s_scale+1}]")
            else:
                A(f"v_mul_f32 v{t}, s{s_scale}, v{t}")
                A(f"v_mul_f32 v{t+1}, s{s_scale}, v{t+1}")
            A(f"v_cvt_pk_bf16_f32 v{x}, v{t}, v{t+1}")
    def sumsq(base):
        A(f"v_dot2_f32_bf16 v{v_p0}, v{base}, v{base}, 0")
        A(f"v_dot2_f32_bf16 v{v_p1}, v{base+1}, v{base+1}, 0")
        for i in range(2, 16):
            p = v_p0 if i % 2 == 0 else v_p1
            A(f"v_dot2_f32_bf16 v{p}, v{base+i}, v{base+i}, v{p}")
        A("s_nop 2")
        A(f"v_add_f32 v{v_p0}, v{v_p0}, v{v_p1}")
    def proj(base):
        for t in range(4):
            for mt in range(4):
                c = "0" if t == 0 else vr(v_D + 4 * mt)
                A(f"v_mfma_f32_16x16x32_bf16 {vr(v_D+4*mt)}, {ar(a_om+16*mt+4*t)}, {vr(base+4*t)}, {c}")

    nloads_after = depth * 8
    A(f"s_waitcnt vmcnt({min(63, nloads_after + 16)})")
    scale_regs(qreg, 16)
    sumsq(qreg)
    A("s_nop 1")
    A(f"v_mfma_f32_16x16x4_f32 {vr(v_ksq)}, v{v_one}, v{v_p0}, 0")
    A(f"s_waitcnt vmcnt({min(63, nloads_after)})")
    proj(qreg)
    A("s_nop 7")
    A(f"v_cvt_pk_bf16_f32 v{v_nh}, 0, v{v_ksq}")
    A(f"v_mul_f32 v{v_nh}, -0.5, v{v_nh}")
    A(f"s_mov_b32 s{s_tmp}, {hex(f2u(LOG2E))}")
    A(f"s_mov_b32 s{s_tmp2}, {hex(f2u(1e-6))}")
    A(f"v_mov_b32 v{v_p1}, 0")
    for i in range(16):
        x = v_D + i
        A(f"v_cvt_pk_bf16_f32 v{x}, 0, v{x}")
        A(f"v_add_f32 v{x}, v{x}, v{v_nh}")
        A(f"v_cvt_pk_bf16_f32 v{x}, 0, v{x}")
        A(f"v_mul_f32 v{x}, s{s_tmp}, v{x}")
        A(f"v_exp_f32 v{x}, v{x}")
        A("s_nop 0")
        A(f"v_cvt_pk_bf16_f32 v{x}, 0, v{x}")
        A(f"v_mul_f32 v{x}, 0x3e000000, v{x}")
        A(f"v_add_f32 v{x}, s{s_tmp2}, v{x}")
        A(f"v_cvt_pk_bf16_f32 v{x}, 0, v{x}")
        A(f"v_add_f32 v{v_p1}, v{v_p1}, v{x}")
        A(f"v_mul_f32 v{x}, 0x3e000000, v{x}")
    for i in range(8):
        A(f"v_cvt_pk_bf16_f32 v{v_pq+i}, v{v_D+2*i}, v{v_D+2*i+1}")
    A(f"v_mul_f32 v{v_p1}, s{s_tmp2}, v{v_p1}")
    A("s_nop 1")
    A(f"v_mfma_f32_16x16x4_f32 {vr(v_c0)}, v{v_one}, v{v_p1}, 0")
    for r in range(4): A(f"v_mov_b32 v{v_acc+r}, 0")
    if not mimic:
        A(f"v_mov_b32 v{v_one}, {hex(f2u(-0.5*SCALE*SCALE*LOG2E))}")
    A("s_nop 7")
    A("s_nop 3")

    A(f"s_mov_b32 s{s_cnt}, {TILES_WAVE // depth}")
    A(".p2align 6")
    A("L_loop:")
    for st in range(depth):
        kb = v_K + 16 * st
        vb = a_V + 16 * st
        A(f"s_waitcnt vmcnt({min(63, depth*8 - 4)})")
        if nocompute:
            issueK(st)
            A(f"s_waitcnt vmcnt({min(63, depth*8 - 4)})")
            issueV(st)
            A(f"s_add_u32 s{s_off}, s{s_off}, {STEP}")
            continue
        if mimic: scale_regs(kb, 16)
        sumsq(kb)
        A("s_nop 1")
        A(f"v_mfma_f32_16x16x4_f32 {vr(v_ksq)}, v{v_one}, v{v_p0}, 0")
        proj(kb)
        issueK(st)
        if mimic:
            A(f"v_cvt_pk_bf16_f32 v{v_nh}, 0, v{v_ksq}")
            A(f"v_mul_f32 v{v_nh}, -0.5, v{v_nh}")
            A("s_nop 1")
        else:
            A("s_nop 3")
        for mt in range(4):
            xs = [v_D + 4 * mt + r for r in range(4)]
            if mimic:
                for x in xs: A(f"v_cvt_pk_bf16_f32 v{x}, 0, v{x}")
                if pk:
                    for h in range(2): A(f"v_pk_add_f32 {vr(xs[2*h],2)}, {vr(xs[2*h],2)}, {vr(v_nh-0,2)} op_sel_hi:[1,0]")
                else:
                    for x in xs: A(f"v_add_f32 v{x}, v{x}, v{v_nh}")
                for x in xs: A(f"v_cvt_pk_bf16_f32 v{x}, 0, v{x}")
                if pk:
                    for h in range(2): A(f"v_pk_mul_f32 {vr(xs[2*h],2)}, {vr(xs[2*h],2)}, s[{s_c1}:{s_c1+1}]")
                else:
                    for x in xs: A(f"v_mul_f32 v{x}, s{s_c1}, v{x}")
            else:
                for x in xs: A(f"v_fma_f32 v{x}, v{x}, s{s_c1}, v{v_ksq}")
            for x in xs: A(f"v_exp_f32 v{x}, v{x}")
            A("s_nop 0")
            A(f"v_cvt_pk_bf16_f32 v{v_P+2*mt}, v{xs[0]}, v{xs[1]}")
            A(f"v_cvt_pk_bf16_f32 v{v_P+2*mt+1}, v{xs[2]}, v{xs[3]}")
        A("s_nop 1")
        A(f"v_mfma_f32_16x16x32_bf16 {vr(v_w)}, {vr(v_P)}, {vr(v_pq)}, {vr(v_c0)}")
        A(f"v_mfma_f32_16x16x32_bf16 {vr(v_w)}, {vr(v_P+4)}, {vr(v_pq+4)}, {vr(v_w)}")
        A("s_nop 7")
        for r in range(4): A(f"v_cvt_pk_bf16_f32 v{v_w+r}, 0, v{v_w+r}")
        for r in range(4):
            for q in range(4):
                A(f"v_perm_b32 v{v_A+4*r+q}, v{v_w+r}, v{v_w+r}, v{v_sel+q}")
        for r in range(4): A(f"v_add_f32 v{v_den}, v{v_den}, v{v_w+r}")
        A(f"s_waitcnt vmcnt({min(63, depth*8 - 4)})")
        for r in range(4):
            A(f"v_mfma_f32_16x16x32_bf16 {vr(v_acc)}, {vr(v_A+4*r)}, {ar(vb+4*r)}, {vr(v_acc)}")
        issueV(st)
        A(f"s_add_u32 s{s_off}, s{s_off}, {STEP}")
    A(f"s_sub_u32 s{s_cnt}, s{s_cnt}, 1")
    A(f"s_cmp_lg_u32 s{s_cnt}, 0")
    A("s_cbranch_scc1 L_loop")

    A(f"v_mov_b32 v{v_one}, 1.0")
    A("s_nop 1")
    A(f"v_mfma_f32_16x16x4_f32 {vr(v_ksq)}, v{v_one}, v{v_den}, 0")
    A(f"v_and_b32 v{v_t+1}, 15, v{v_lane}")
    A(f"v_lshrrev_b32 v{v_t+2}, 4, v{v_lane}")
    A(f"v_lshlrev_b32 v{v_t}, 5, v{v_t+1}")
    A(f"v_lshl_add_u32 v{v_t}, v{v_t+2}, 4, v{v_t}")
    A(f"s_lshl_b32 s{s_tmp}, s{s_wave}, 9")
    A(f"v_add_u32 v{v_t}, s{s_tmp}, v{v_t}")
    A(f"s_lshl_b32 s{s_tmp}, s{s_wave}, 2")
    A(f"s_add_u32 s{s_tmp}, s{s_tmp}, {W*512}")
    A(f"v_mov_b32 v{v_t+3}, s{s_tmp}")
    A("s_nop 4")
    A(f"s_mov_b32 exec_hi, 0")
    A(f"ds_write_b128 v{v_t}, {vr(v_acc)}")
    A(f"s_mov_b64 exec, 1")
    A(f"ds_write_b32 v{v_t+3}, v{v_ksq}")
    A(f"s_mov_b64 exec, -1")
    A("s_waitcnt vmcnt(0) lgkmcnt(0)")
    if stamp:
        A(f"s_memrealtime s[{s_t1}:{s_t1+1}]")
        A("s_waitcnt lgkmcnt(0)")
        A(f"s_mul_i32 s{s_tmp}, s2, {W}\ns_add_u32 s{s_tmp}, s{s_tmp}, s{s_wave}\ns_lshl_b32 s{s_tmp}, s{s_tmp}, 4")
        A(f"s_add_u32 s{s_tmp}, s{s_tmp}, 0x100000")
        A(f"s_getreg_b32 s{s_tmp2}, hwreg(HW_REG_XCC_ID)")
        A(f"v_mov_b32 v{v_D}, s{s_t0}\nv_mov_b32 v{v_D+1}, s{s_t1}\nv_mov_b32 v{v_D+2}, s{s_tmp2}\nv_mov_b32 v{v_D+3}, 0\nv_mov_b32 v{v_D+4}, s{s_tmp}")
        A(f"s_mov_b64 exec, 1")
        A(f"global_store_dwordx4 v{v_D+4}, {vr(v_D)}, s[{s_ws}:{s_ws+1}]")
        A(f"s_mov_b64 exec, -1")
    A("s_barrier")
    A(f"s_cmp_lg_u32 s{s_wave}, 0")
    A("s_cbranch_scc1 L_done")
    A(f"v_lshlrev_b32 v{v_t}, 3, v{v_lane}")
    for w in range(W):
        A(f"ds_read_b64 {vr(v_D+2*w,2)}, v{v_t} offset:{512*w}")
    A(f"v_mov_b32 v{v_t+1}, {W*512}")
    for h in range(W // 4):
        A(f"ds_read_b128 {vr(v_K+4*h)}, v{v_t+1} offset:{16*h}")
    A("s_waitcnt lgkmcnt(0)")
    for w in range(1, W):
        A(f"v_add_f32 v{v_D}, v{v_D}, v{v_D+2*w}")
        A(f"v_add_f32 v{v_D+1}, v{v_D+1}, v{v_D+2*w+1}")
        A(f"v_add_f32 v{v_K}, v{v_K}, v{v_K+w}")
    A(f"s_lshl_b32 s{s_tmp}, s2, 10")
    A(f"v_add_u32 v{v_t+1}, s{s_tmp}, v{v_t}")
    A(f"global_store_dwordx2 v{v_t+1}, {vr(v_D,2)}, s[{s_ws}:{s_ws+1}] sc0 sc1")
    A(f"v_mov_b32 v{v_t+2}, s{s_tmp}")
    A(f"s_mov_b64 exec, 1")
    A(f"global_store_dword v{v_t+2}, v{v_K}, s[{s_ws}:{s_ws+1}] offset:512 sc0 sc1")
    A(f"s_lshr_b32 s{s_tmp2}, s{s_head}, 1")
    A(f"s_lshl_b32 s{s_tmp2}, s{s_tmp2}, 2")
    A(f"v_mov_b32 v{v_t+3}, s{s_tmp2}")
    A(f"s_and_b32 s{s_tmp2}, s{s_head}, 1")
    A(f"s_lshl_b32 s{s_tmp2}, s{s_tmp2}, 4")
    A(f"s_lshl_b32 s{s_cnt}, 1, s{s_tmp2}")
    A(f"v_mov_b32 v{v_p0}, s{s_cnt}")
    A("s_waitcnt vmcnt(0)")
    A(f"global_atomic_add v{v_p1}, v{v_t+3}, v{v_p0}, s[{s_dbg}:{s_dbg+1}] sc0")
    A("s_waitcnt vmcnt(0)")
    A(f"v_readfirstlane_b32 s{s_cnt}, v{v_p1}")
    A(f"s_mov_b64 exec, -1")
    A(f"s_lshr_b32 s{s_cnt}, s{s_cnt}, s{s_tmp2}")
    A(f"s_and_b32 s{s_cnt}, s{s_cnt}, 0xffff")
    A(f"s_cmp_eq_u32 s{s_cnt}, 0")
    A("s_cbranch_scc1 L_fin" )
    A(f"v_xor_b32 v{v_t+1}, 1024, v{v_t+1}")
    A(f"v_xor_b32 v{v_t+2}, 1024, v{v_t+2}")
    A(f"global_load_dwordx2 {vr(v_D+2,2)}, v{v_t+1}, s[{s_ws}:{s_ws+1}] sc0 sc1")
    A(f"global_load_dword v{v_K+1}, v{v_t+2}, s[{s_ws}:{s_ws+1}] offset:512 sc0 sc1")
    A(f"s_lshl_b32 s{s_tmp}, s{s_head}, 8")
    A(f"v_lshlrev_b32 v{v_t}, 2, v{v_lane}")
    A(f"v_add_u32 v{v_t}, s{s_tmp}, v{v_t}")
    A("s_waitcnt vmcnt(0)")
    A(f"v_add_f32 v{v_D}, v{v_D}, v{v_D+2}")
    A(f"v_add_f32 v{v_D+1}, v{v_D+1}, v{v_D+3}")
    A(f"v_add_f32 v{v_K}, v{v_K}, v{v_K+1}")
    A(f"v_add_f32 v{v_K}, {hex(f2u(1e-6))}, v{v_K}")
    den = v_K
    for i in range(2):
        n = v_D + i
        a, b, c, d_, e = v_P, v_P+1, v_P+2, v_P+3, v_P+4
        A(f"v_div_scale_f32 v{a}, s[{s_t0}:{s_t0+1}], v{den}, v{den}, v{n}")
        A(f"v_rcp_f32 v{b}, v{a}")
        A(f"v_div_scale_f32 v{c}, vcc, v{n}, v{den}, v{n}")
        A(f"v_fma_f32 v{d_}, -v{a}, v{b}, 1.0")
        A(f"v_fma_f32 v{b}, v{d_}, v{b}, v{b}")
        A(f"v_mul_f32 v{d_}, v{c}, v{b}")
        A(f"v_fma_f32 v{e}, -v{a}, v{d_}, v{c}")
        A(f"v_fma_f32 v{d_}, v{e}, v{b}, v{d_}")
        A(f"v_fma_f32 v{a}, -v{a}, v{d_}, v{c}")
        A("s_nop 1")
        A(f"v_div_fmas_f32 v{a}, v{a}, v{b}, v{d_}")
        A(f"v_div_fixup_f32 v{n}, v{a}, v{den}, v{n}")
    A(f"v_cvt_pk_bf16_f32 v{v_D}, v{v_D}, v{v_D+1}")
    A(f"global_store_dword v{v_t}, v{v_D}, s[{s_out}:{s_out+1}]")
    A("L_fin:")
    if stamp:
        A("s_waitcnt vmcnt(0)")
        A(f"s_memrealtime s[{s_t1}:{s_t1+1}]")
        A("s_waitcnt lgkmcnt(0)")
        A(f"s_lshl_b32 s{s_tmp}, s2, 4")
        A(f"s_add_u32 s{s_tmp}, s{s_tmp}, 0x180000")
        A(f"v_mov_b32 v{v_D}, s{s_cnt}\nv_mov_b32 v{v_D+1}, s{s_t1}\nv_mov_b32 v{v_D+4}, s{s_tmp}")
        A(f"s_mov_b64 exec, 1")
        A(f"global_store_dwordx2 v{v_D+4}, {vr(v_D,2)}, s[{s_ws}:{s_ws+1}]")
    A("L_done:")
    A("s_endpgm")

    out = HEADER + f"; @launch grid=({NWG},1,1) block=({W*64},1,1) lds={lds}\n"
    out += f'.amdgcn_target "amdgcn-amd-amdhsa--gfx950"\n.text\n.globl {name}\n.p2align 8\n.type {name},@function\n{name}:\n'
    out += A.text()
    out += f""".section .rodata,"a"
.p2align 6
.amdhsa_kernel {name}
  .amdhsa_next_free_vgpr {total}
  .amdhsa_next_free_sgpr 48
  .amdhsa_accum_offset {acc_off}
  .amdhsa_group_segment_fixed_size 0
  .amdhsa_kernarg_size 56
  .amdhsa_user_sgpr_count 2
  .amdhsa_user_sgpr_kernarg_segment_ptr 1
  .amdhsa_system_sgpr_workgroup_id_x 1
  .amdhsa_float_denorm_mode_32 3
.end_amdhsa_kernel
"""
    if meta: out += META.format(name=name, vgpr=total, wg=W*64)
    return out, f"{NWG}:{W*64}:{lds}", total

if __name__ == "__main__":
    if sys.argv[1] == "final":
        kw = eval("dict(" + (sys.argv[3] if len(sys.argv) > 3 else "") + ")")
        t, g, tot = gen(**kw)
        open(sys.argv[2], "w").write(t)
        print(g, "regs", tot)
    else:
        cfgs = eval(open(sys.argv[1]).read())
        specs = []
        for c in cfgs:
            t, g, tot = gen(meta=True, **c)
            n = c["name"]
            open(n + ".s", "w").write(t)
            subprocess.check_call(["clang", "-x", "assembler", "-target", "amdgcn-amd-amdhsa", "-mcpu=gfx950", n + ".s", "-o", n + ".co"])
            specs.append(f"{n}.co:{n}:{g}")
            print(n, "regs", tot, file=sys.stderr)
        open("specs.txt", "w").write(" ".join(specs))
```

```python
import struct, sys, subprocess, argparse

def f2u(x): return struct.unpack("<I", struct.pack("<f", x))[0]
def f32(x): return struct.unpack("<f", struct.pack("<f", x))[0]
SCALE = f32(128.0 ** -0.25)
LOG2E = 1.4426950408889634

HEADER = """; Kernarg layout for this problem (56 bytes, ptrs only, base s[0:1]):
"""
META = """
.amdgpu_metadata
---
amdhsa.version: [1, 2]
amdhsa.kernels:
  - .name: {name}
    .symbol: {name}.kd
    .kernarg_segment_size: 56
    .kernarg_segment_align: 8
    .group_segment_fixed_size: 0
    .private_segment_fixed_size: 0
    .wavefront_size: 64
    .sgpr_count: 102
    .vgpr_count: {vgpr}
    .max_flat_workgroup_size: {wg}
    .args:
      - {{.name: kernargs, .size: 56, .offset: 0, .value_kind: by_value}}
...
.end_amdgpu_metadata
"""

class G:
    def __init__(s): s.L = []
    def __call__(s, t):
        for line in t.split("\n"):
            line = line.strip()
            if line: s.L.append(("" if line.endswith(":") else "    ") + line)
    def text(s): return "\n".join(s.L) + "\n"

def vr(b, n=4): return f"v[{b}:{b+n-1}]"
def ar(b, n=4): return f"a[{b}:{b+n-1}]"

def gen(name="standalone__linear_kernel_rfa__decode_kernel", W=8, depth=4, mimic=True, pk=False,
        flags="nt", stamp=False, meta=False, nocompute=False, dbgstamp=False):
    NWG = 256
    ROWS_WG = 4096
    TILES_WAVE = ROWS_WG // 16 // W
    assert TILES_WAVE % depth == 0
    A = G()
    sK, sV, sO, sQ = 8, 12, 16, 20
    s_wave, s_head, s_off, s_cnt = 3, 24, 25, 26
    s_out, s_dbg, s_ws = 28, 30, 32
    s_scale, s_c1, s_tmp, s_tmp2 = 34, 36, 38, 39
    s_t0, s_t1 = 40, 42
    v_lane = 0
    v_ko, v_vo = 1, 2
    v_one, v_nh, v_den, v_p0, v_p1 = 3, 4, 5, 6, 7
    v_sel = 8
    v_pq = 12
    v_c0 = 20
    v_acc = 24
    v_ksq = 28
    v_w = 32
    v_P = 36
    v_D = 44
    v_A = 44
    v_t = 60
    v_K = 64
    nv = v_K + depth * 16
    acc_off = (nv + 3) // 4 * 4
    a_om = 0
    a_V = 64
    na = a_V + depth * 16
    total = acc_off + na
    lds = W * 512 + 64

    A(f"s_cmp_ge_u32 s2, {NWG}")
    A("s_cbranch_scc1 L_done")
    A("s_load_dwordx8 s[4:11], s[0:1], 0")
    A(f"s_load_dwordx4 s[{s_out}:{s_out+3}], s[0:1], 32")
    A(f"s_load_dwordx2 s[{s_ws}:{s_ws+1}], s[0:1], 48")
    if stamp or dbgstamp: A(f"s_memrealtime s[{s_t0}:{s_t0+1}]")
    A(f"v_lshrrev_b32 v{v_t}, 6, v0")
    A(f"v_and_b32 v{v_lane}, 63, v0")
    A(f"v_readfirstlane_b32 s{s_wave}, v{v_t}")
    A(f"v_and_b32 v{v_t+1}, 15, v{v_lane}")
    A(f"v_lshrrev_b32 v{v_t+2}, 4, v{v_lane}")
    A(f"v_lshlrev_b32 v{v_ko}, 8, v{v_t+1}")
    A(f"v_lshl_add_u32 v{v_ko}, v{v_t+2}, 4, v{v_ko}")
    A(f"v_lshlrev_b32 v{v_vo}, 10, v{v_t+2}")
    A(f"v_lshl_add_u32 v{v_vo}, v{v_t+1}, 4, v{v_vo}")
    A(f"v_lshlrev_b32 v{v_t+3}, 4, v{v_t+2}")
    A(f"s_lshr_b32 s{s_head}, s2, 1")
    A(f"s_lshl_b32 s{s_off}, s{s_wave}, 12")
    A(f"s_lshr_b32 s{s_tmp}, s2, 12")
    A(f"s_lshl_b32 s{s_tmp2}, s2, 20")
    A("s_waitcnt lgkmcnt(0)")
    A(f"""s_mov_b32 s{sQ}, s4
    s_and_b32 s{sQ+1}, s5, 0xffff
    s_mov_b32 s{sQ+2}, 32768
    s_mov_b32 s{sQ+3}, 0x20000
    s_mov_b32 s{sO}, s10
    s_and_b32 s{sO+1}, s11, 0xffff
    s_mov_b32 s{sO+2}, 16384
    s_mov_b32 s{sO+3}, 0x20000
    s_add_u32 s{sV}, s8, s{s_tmp2}
    s_addc_u32 s{sV+1}, s9, 0
    s_and_b32 s{sV+1}, s{sV+1}, 0xffff
    s_mov_b32 s{sV+2}, {ROWS_WG*256}
    s_mov_b32 s{sV+3}, 0x20000
    s_add_u32 s{sK}, s6, s{s_tmp2}
    s_addc_u32 s{sK+1}, s7, 0
    s_and_b32 s{sK+1}, s{sK+1}, 0xffff
    s_mov_b32 s{sK+2}, {ROWS_WG*256}
    s_mov_b32 s{sK+3}, 0x20000""")
    A(f"s_lshl_b32 s{s_tmp}, s{s_head}, 8")
    qreg = v_pq
    for t in range(4):
        A(f"buffer_load_dwordx4 {vr(qreg+4*t)}, v{v_t+3}, s[{sQ}:{sQ+3}], s{s_tmp} offen offset:{64*t}")
    for mt in range(4):
        if mt: A(f"s_mov_b32 s{s_tmp2}, {4096*mt}")
        so = f"s{s_tmp2}" if mt else "0"
        for t in range(4):
            A(f"buffer_load_dwordx4 {ar(a_om+16*mt+4*t)}, v{v_ko}, s[{sO}:{sO+3}], {so} offen offset:{64*t}")

    def issueK(st):
        for t in range(4):
            A(f"buffer_load_dwordx4 {vr(v_K+16*st+4*t)}, v{v_ko}, s[{sK}:{sK+3}], s{s_off} offen offset:{64*t} {flags}")
    def issueV(st):
        for r in range(4):
            A(f"buffer_load_dwordx4 {ar(a_V+16*st+4*r)}, v{v_vo}, s[{sV}:{sV+3}], s{s_off} offen offset:{256*r} {flags}")
    STEP = W * 4096
    for st in range(depth):
        issueK(st); issueV(st)
        A(f"s_add_u32 s{s_off}, s{s_off}, {STEP}")
    A(f"s_mov_b32 s{s_scale}, {hex(f2u(SCALE))}")
    A(f"s_mov_b32 s{s_scale+1}, {hex(f2u(SCALE))}")
    c1 = LOG2E if mimic else SCALE * LOG2E
    A(f"s_mov_b32 s{s_c1}, {hex(f2u(c1))}")
    A(f"s_mov_b32 s{s_c1+1}, {hex(f2u(c1))}")
    A(f"v_mov_b32 v{v_den}, 0")
    A(f"v_mov_b32 v{v_p0}, 0x0c0c0302")
    A(f"v_mov_b32 v{v_p1}, 0x03020c0c")
    for q in range(4):
        A(f"v_mov_b32 v{v_sel+q}, 0x0c0c0c0c")
        A(f"v_cmp_eq_u32 vcc, {2*q}, v{v_t+1}")
        A("s_nop 1")
        A(f"v_cndmask_b32 v{v_sel+q}, v{v_sel+q}, v{v_p0}, vcc")
        A(f"v_cmp_eq_u32 vcc, {2*q+1}, v{v_t+1}")
        A("s_nop 1")
        A(f"v_cndmask_b32 v{v_sel+q}, v{v_sel+q}, v{v_p1}, vcc")
    A(f"v_mov_b32 v{v_one}, 1.0")

    def scale_regs(base, n):
        for i in range(n):
            t = v_t + 2 * (i % 2)
            x = base + i
            A(f"v_lshlrev_b32 v{t}, 16, v{x}")
            A(f"v_and_b32 v{t+1}, 0xffff0000, v{x}")
            if pk:
                A(f"v_pk_mul_f32 {vr(t,2)}, {vr(t,2)}, s[{s_scale}:{s_scale+1}]")
            else:
                A(f"v_mul_f32 v{t}, s{s_scale}, v{t}")
                A(f"v_mul_f32 v{t+1}, s{s_scale}, v{t+1}")
            A(f"v_cvt_pk_bf16_f32 v{x}, v{t}, v{t+1}")
    def sumsq(base):
        A(f"v_dot2_f32_bf16 v{v_p0}, v{base}, v{base}, 0")
        A(f"v_dot2_f32_bf16 v{v_p1}, v{base+1}, v{base+1}, 0")
        for i in range(2, 16):
            p = v_p0 if i % 2 == 0 else v_p1
            A(f"v_dot2_f32_bf16 v{p}, v{base+i}, v{base+i}, v{p}")
        A("s_nop 2")
        A(f"v_add_f32 v{v_p0}, v{v_p0}, v{v_p1}")
    def proj(base):
        for t in range(4):
            for mt in range(4):
                c = "0" if t == 0 else vr(v_D + 4 * mt)
                A(f"v_mfma_f32_16x16x32_bf16 {vr(v_D+4*mt)}, {ar(a_om+16*mt+4*t)}, {vr(base+4*t)}, {c}")

    nloads_after = depth * 8
    A(f"s_waitcnt vmcnt({min(63, nloads_after + 16)})")
    scale_regs(qreg, 16)
    sumsq(qreg)
    A("s_nop 1")
    A(f"v_mfma_f32_16x16x4_f32 {vr(v_ksq)}, v{v_one}, v{v_p0}, 0")
    A(f"s_waitcnt vmcnt({min(63, nloads_after)})")
    proj(qreg)
    A("s_nop 7")
    A(f"v_cvt_pk_bf16_f32 v{v_nh}, 0, v{v_ksq}")
    A(f"v_mul_f32 v{v_nh}, -0.5, v{v_nh}")
    A(f"s_mov_b32 s{s_tmp}, {hex(f2u(LOG2E))}")
    A(f"s_mov_b32 s{s_tmp2}, {hex(f2u(1e-6))}")
    A(f"v_mov_b32 v{v_p1}, 0")
    for i in range(16):
        x = v_D + i
        A(f"v_cvt_pk_bf16_f32 v{x}, 0, v{x}")
        A(f"v_add_f32 v{x}, v{x}, v{v_nh}")
        A(f"v_cvt_pk_bf16_f32 v{x}, 0, v{x}")
        A(f"v_mul_f32 v{x}, s{s_tmp}, v{x}")
        A(f"v_exp_f32 v{x}, v{x}")
        A("s_nop 0")
        A(f"v_cvt_pk_bf16_f32 v{x}, 0, v{x}")
        A(f"v_mul_f32 v{x}, 0x3e000000, v{x}")
        A(f"v_add_f32 v{x}, s{s_tmp2}, v{x}")
        A(f"v_cvt_pk_bf16_f32 v{x}, 0, v{x}")
        A(f"v_add_f32 v{v_p1}, v{v_p1}, v{x}")
        A(f"v_mul_f32 v{x}, 0x3e000000, v{x}")
    for i in range(8):
        A(f"v_cvt_pk_bf16_f32 v{v_pq+i}, v{v_D+2*i}, v{v_D+2*i+1}")
    A(f"v_mul_f32 v{v_p1}, s{s_tmp2}, v{v_p1}")
    A("s_nop 1")
    A(f"v_mfma_f32_16x16x4_f32 {vr(v_c0)}, v{v_one}, v{v_p1}, 0")
    for r in range(4): A(f"v_mov_b32 v{v_acc+r}, 0")
    if not mimic:
        A(f"v_mov_b32 v{v_one}, {hex(f2u(-0.5*SCALE*SCALE*LOG2E))}")
    A("s_nop 7")
    A("s_nop 3")

    A(f"s_mov_b32 s{s_cnt}, {TILES_WAVE // depth}")
    A(".p2align 6")
    A("L_loop:")
    for st in range(depth):
        kb = v_K + 16 * st
        vb = a_V + 16 * st
        A(f"s_waitcnt vmcnt({min(63, depth*8 - 4)})")
        if nocompute:
            issueK(st)
            A(f"s_waitcnt vmcnt({min(63, depth*8 - 4)})")
            issueV(st)
            A(f"s_add_u32 s{s_off}, s{s_off}, {STEP}")
            continue
        if mimic: scale_regs(kb, 16)
        sumsq(kb)
        A("s_nop 1")
        A(f"v_mfma_f32_16x16x4_f32 {vr(v_ksq)}, v{v_one}, v{v_p0}, 0")
        proj(kb)
        issueK(st)
        if mimic:
            A(f"v_cvt_pk_bf16_f32 v{v_nh}, 0, v{v_ksq}")
            A(f"v_mul_f32 v{v_nh}, -0.5, v{v_nh}")
            A("s_nop 1")
        else:
            A("s_nop 3")
        for mt in range(4):
            xs = [v_D + 4 * mt + r for r in range(4)]
            if mimic:
                for x in xs: A(f"v_cvt_pk_bf16_f32 v{x}, 0, v{x}")
                if pk:
                    for h in range(2): A(f"v_pk_add_f32 {vr(xs[2*h],2)}, {vr(xs[2*h],2)}, {vr(v_nh-0,2)} op_sel_hi:[1,0]")
                else:
                    for x in xs: A(f"v_add_f32 v{x}, v{x}, v{v_nh}")
                for x in xs: A(f"v_cvt_pk_bf16_f32 v{x}, 0, v{x}")
                if pk:
                    for h in range(2): A(f"v_pk_mul_f32 {vr(xs[2*h],2)}, {vr(xs[2*h],2)}, s[{s_c1}:{s_c1+1}]")
                else:
                    for x in xs: A(f"v_mul_f32 v{x}, s{s_c1}, v{x}")
            else:
                for x in xs: A(f"v_fma_f32 v{x}, v{x}, s{s_c1}, v{v_ksq}")
            for x in xs: A(f"v_exp_f32 v{x}, v{x}")
            A("s_nop 0")
            A(f"v_cvt_pk_bf16_f32 v{v_P+2*mt}, v{xs[0]}, v{xs[1]}")
            A(f"v_cvt_pk_bf16_f32 v{v_P+2*mt+1}, v{xs[2]}, v{xs[3]}")
        A("s_nop 1")
        A(f"v_mfma_f32_16x16x32_bf16 {vr(v_w)}, {vr(v_P)}, {vr(v_pq)}, {vr(v_c0)}")
        A(f"v_mfma_f32_16x16x32_bf16 {vr(v_w)}, {vr(v_P+4)}, {vr(v_pq+4)}, {vr(v_w)}")
        A("s_nop 7")
        for r in range(4): A(f"v_cvt_pk_bf16_f32 v{v_w+r}, 0, v{v_w+r}")
        for r in range(4):
            for q in range(4):
                A(f"v_perm_b32 v{v_A+4*r+q}, v{v_w+r}, v{v_w+r}, v{v_sel+q}")
        for r in range(4): A(f"v_add_f32 v{v_den}, v{v_den}, v{v_w+r}")
        A(f"s_waitcnt vmcnt({min(63, depth*8 - 4)})")
        for r in range(4):
            A(f"v_mfma_f32_16x16x32_bf16 {vr(v_acc)}, {vr(v_A+4*r)}, {ar(vb+4*r)}, {vr(v_acc)}")
        issueV(st)
        A(f"s_add_u32 s{s_off}, s{s_off}, {STEP}")
    A(f"s_sub_u32 s{s_cnt}, s{s_cnt}, 1")
    A(f"s_cmp_lg_u32 s{s_cnt}, 0")
    A("s_cbranch_scc1 L_loop")

    A(f"v_mov_b32 v{v_one}, 1.0")
    A("s_nop 1")
    A(f"v_mfma_f32_16x16x4_f32 {vr(v_ksq)}, v{v_one}, v{v_den}, 0")
    A(f"v_and_b32 v{v_t+1}, 15, v{v_lane}")
    A(f"v_lshrrev_b32 v{v_t+2}, 4, v{v_lane}")
    A(f"v_lshlrev_b32 v{v_t}, 5, v{v_t+1}")
    A(f"v_lshl_add_u32 v{v_t}, v{v_t+2}, 4, v{v_t}")
    A(f"s_lshl_b32 s{s_tmp}, s{s_wave}, 9")
    A(f"v_add_u32 v{v_t}, s{s_tmp}, v{v_t}")
    A(f"s_lshl_b32 s{s_tmp}, s{s_wave}, 2")
    A(f"s_add_u32 s{s_tmp}, s{s_tmp}, {W*512}")
    A(f"v_mov_b32 v{v_t+3}, s{s_tmp}")
    A("s_nop 4")
    A(f"s_mov_b32 exec_hi, 0")
    A(f"ds_write_b128 v{v_t}, {vr(v_acc)}")
    A(f"s_mov_b64 exec, 1")
    A(f"ds_write_b32 v{v_t+3}, v{v_ksq}")
    A(f"s_mov_b64 exec, -1")
    A("s_waitcnt vmcnt(0) lgkmcnt(0)")
    if stamp:
        A(f"s_memrealtime s[{s_t1}:{s_t1+1}]")
        A("s_waitcnt lgkmcnt(0)")
        A(f"s_mul_i32 s{s_tmp}, s2, {W}\ns_add_u32 s{s_tmp}, s{s_tmp}, s{s_wave}\ns_lshl_b32 s{s_tmp}, s{s_tmp}, 4")
        A(f"s_add_u32 s{s_tmp}, s{s_tmp}, 0x100000")
        A(f"s_getreg_b32 s{s_tmp2}, hwreg(HW_REG_XCC_ID)")
        A(f"v_mov_b32 v{v_D}, s{s_t0}\nv_mov_b32 v{v_D+1}, s{s_t1}\nv_mov_b32 v{v_D+2}, s{s_tmp2}\nv_mov_b32 v{v_D+3}, 0\nv_mov_b32 v{v_D+4}, s{s_tmp}")
        A(f"s_mov_b64 exec, 1")
        A(f"global_store_dwordx4 v{v_D+4}, {vr(v_D)}, s[{s_ws}:{s_ws+1}]")
        A(f"s_mov_b64 exec, -1")
    if dbgstamp:
        A(f"s_memrealtime s[{s_t1}:{s_t1+1}]")
        A("s_waitcnt lgkmcnt(0)")
        A(f"s_getreg_b32 s{s_tmp2}, hwreg(HW_REG_XCC_ID)")
        A(f"s_and_b32 s{s_tmp2}, s{s_tmp2}, 7")
        A(f"s_lshl_b32 s{s_tmp2}, s{s_tmp2}, 2")
        A(f"s_add_u32 s{s_tmp2}, s{s_tmp2}, 32")
        A(f"s_not_b32 s{s_tmp}, s{s_t0}")
        A(f"v_mov_b32 v{v_D}, s{s_tmp}\nv_mov_b32 v{v_D+1}, s{s_t1}\nv_mov_b32 v{v_D+2}, s{s_t0}\nv_mov_b32 v{v_D+3}, s{s_tmp2}\nv_mov_b32 v{v_D+4}, 0")
        A(f"s_not_b32 s{s_tmp}, s{s_t1}")
        A(f"v_mov_b32 v{v_D+5}, s{s_tmp}")
        A(f"s_mov_b64 exec, 1")
        A(f"global_atomic_umax v{v_D+4}, v{v_D}, s[{s_dbg}:{s_dbg+1}]")
        A(f"global_atomic_umax v{v_D+4}, v{v_D+1}, s[{s_dbg}:{s_dbg+1}] offset:4")
        A(f"global_atomic_umax v{v_D+4}, v{v_D+2}, s[{s_dbg}:{s_dbg+1}] offset:12")
        A(f"global_atomic_umax v{v_D+4}, v{v_D+5}, s[{s_dbg}:{s_dbg+1}] offset:16")
        A(f"global_atomic_umax v{v_D+3}, v{v_D+1}, s[{s_dbg}:{s_dbg+1}]")
        A(f"s_mov_b64 exec, -1")
    A("s_barrier")
    A(f"s_cmp_lg_u32 s{s_wave}, 0")
    A("s_cbranch_scc1 L_done")
    A(f"v_lshlrev_b32 v{v_t}, 3, v{v_lane}")
    for w in range(W):
        A(f"ds_read_b64 {vr(v_D+2*w,2)}, v{v_t} offset:{512*w}")
    A(f"v_mov_b32 v{v_t+1}, {W*512}")
    for h in range(W // 4):
        A(f"ds_read_b128 {vr(v_K+4*h)}, v{v_t+1} offset:{16*h}")
    A("s_waitcnt lgkmcnt(0)")
    for w in range(1, W):
        A(f"v_add_f32 v{v_D}, v{v_D}, v{v_D+2*w}")
        A(f"v_add_f32 v{v_D+1}, v{v_D+1}, v{v_D+2*w+1}")
        A(f"v_add_f32 v{v_K}, v{v_K}, v{v_K+w}")
    A(f"s_lshl_b32 s{s_tmp}, s2, 10")
    A(f"v_add_u32 v{v_t+1}, s{s_tmp}, v{v_t}")
    A(f"global_store_dwordx2 v{v_t+1}, {vr(v_D,2)}, s[{s_ws}:{s_ws+1}] sc0 sc1")
    A(f"v_mov_b32 v{v_t+2}, s{s_tmp}")
    A(f"s_mov_b64 exec, 1")
    A(f"global_store_dword v{v_t+2}, v{v_K}, s[{s_ws}:{s_ws+1}] offset:512 sc0 sc1")
    A(f"s_and_b32 s{s_tmp2}, s{s_head}, 0x7c")
    A(f"s_add_u32 s{s_tmp2}, s{s_tmp2}, 128")
    A(f"v_mov_b32 v{v_t+3}, s{s_tmp2}")
    A(f"s_and_b32 s{s_tmp2}, s{s_head}, 3")
    A(f"s_lshl_b32 s{s_tmp2}, s{s_tmp2}, 3")
    A(f"s_lshl_b32 s{s_cnt}, 1, s{s_tmp2}")
    A(f"v_mov_b32 v{v_p0}, s{s_cnt}")
    A("s_waitcnt vmcnt(0)")
    A(f"global_atomic_add v{v_p1}, v{v_t+3}, v{v_p0}, s[{s_dbg}:{s_dbg+1}] sc0")
    A("s_waitcnt vmcnt(0)")
    A(f"v_readfirstlane_b32 s{s_cnt}, v{v_p1}")
    A(f"s_mov_b64 exec, -1")
    A(f"s_lshr_b32 s{s_cnt}, s{s_cnt}, s{s_tmp2}")
    A(f"s_and_b32 s{s_cnt}, s{s_cnt}, 0xff")
    A(f"s_cmp_eq_u32 s{s_cnt}, 0")
    A("s_cbranch_scc1 L_fin" )
    A(f"v_xor_b32 v{v_t+1}, 1024, v{v_t+1}")
    A(f"v_xor_b32 v{v_t+2}, 1024, v{v_t+2}")
    A(f"global_load_dwordx2 {vr(v_D+2,2)}, v{v_t+1}, s[{s_ws}:{s_ws+1}] sc0 sc1")
    A(f"global_load_dword v{v_K+1}, v{v_t+2}, s[{s_ws}:{s_ws+1}] offset:512 sc0 sc1")
    A(f"s_lshl_b32 s{s_tmp}, s{s_head}, 8")
    A(f"v_lshlrev_b32 v{v_t}, 2, v{v_lane}")
    A(f"v_add_u32 v{v_t}, s{s_tmp}, v{v_t}")
    A("s_waitcnt vmcnt(0)")
    A(f"v_add_f32 v{v_D}, v{v_D}, v{v_D+2}")
    A(f"v_add_f32 v{v_D+1}, v{v_D+1}, v{v_D+3}")
    A(f"v_add_f32 v{v_K}, v{v_K}, v{v_K+1}")
    A(f"v_add_f32 v{v_K}, {hex(f2u(1e-6))}, v{v_K}")
    den = v_K
    for i in range(2):
        n = v_D + i
        a, b, c, d_, e = v_P, v_P+1, v_P+2, v_P+3, v_P+4
        A(f"v_div_scale_f32 v{a}, s[{s_t0}:{s_t0+1}], v{den}, v{den}, v{n}")
        A(f"v_rcp_f32 v{b}, v{a}")
        A(f"v_div_scale_f32 v{c}, vcc, v{n}, v{den}, v{n}")
        A(f"v_fma_f32 v{d_}, -v{a}, v{b}, 1.0")
        A(f"v_fma_f32 v{b}, v{d_}, v{b}, v{b}")
        A(f"v_mul_f32 v{d_}, v{c}, v{b}")
        A(f"v_fma_f32 v{e}, -v{a}, v{d_}, v{c}")
        A(f"v_fma_f32 v{d_}, v{e}, v{b}, v{d_}")
        A(f"v_fma_f32 v{a}, -v{a}, v{d_}, v{c}")
        A("s_nop 1")
        A(f"v_div_fmas_f32 v{a}, v{a}, v{b}, v{d_}")
        A(f"v_div_fixup_f32 v{n}, v{a}, v{den}, v{n}")
    A(f"v_cvt_pk_bf16_f32 v{v_D}, v{v_D}, v{v_D+1}")
    A(f"global_store_dword v{v_t}, v{v_D}, s[{s_out}:{s_out+1}]")
    A("L_fin:")
    if dbgstamp:
        A("s_waitcnt vmcnt(0)")
        A(f"s_memrealtime s[{s_t1}:{s_t1+1}]")
        A("s_waitcnt lgkmcnt(0)")
        A(f"v_mov_b32 v{v_D+1}, s{s_t1}\nv_mov_b32 v{v_D+4}, 0")
        A(f"s_mov_b64 exec, 1")
        A(f"global_atomic_umax v{v_D+4}, v{v_D+1}, s[{s_dbg}:{s_dbg+1}] offset:8")
    if stamp:
        A("s_waitcnt vmcnt(0)")
        A(f"s_memrealtime s[{s_t1}:{s_t1+1}]")
        A("s_waitcnt lgkmcnt(0)")
        A(f"s_lshl_b32 s{s_tmp}, s2, 4")
        A(f"s_add_u32 s{s_tmp}, s{s_tmp}, 0x180000")
        A(f"v_mov_b32 v{v_D}, s{s_cnt}\nv_mov_b32 v{v_D+1}, s{s_t1}\nv_mov_b32 v{v_D+4}, s{s_tmp}")
        A(f"s_mov_b64 exec, 1")
        A(f"global_store_dwordx2 v{v_D+4}, {vr(v_D,2)}, s[{s_ws}:{s_ws+1}]")
    A("L_done:")
    A("s_endpgm")

    out = HEADER + f"; @launch grid=({NWG},1,1) block=({W*64},1,1) lds={lds}\n"
    out += f'.amdgcn_target "amdgcn-amd-amdhsa--gfx950"\n.text\n.globl {name}\n.p2align 8\n.type {name},@function\n{name}:\n'
    out += A.text()
    out += f""".section .rodata,"a"
.p2align 6
.amdhsa_kernel {name}
  .amdhsa_next_free_vgpr {total}
  .amdhsa_next_free_sgpr 48
  .amdhsa_accum_offset {acc_off}
  .amdhsa_group_segment_fixed_size 0
  .amdhsa_kernarg_size 56
  .amdhsa_user_sgpr_count 2
  .amdhsa_user_sgpr_kernarg_segment_ptr 1
  .amdhsa_system_sgpr_workgroup_id_x 1
  .amdhsa_float_denorm_mode_32 3
.end_amdhsa_kernel
"""
    if meta: out += META.format(name=name, vgpr=total, wg=W*64)
    return out, f"{NWG}:{W*64}:{lds}", total

if __name__ == "__main__":
    if sys.argv[1] == "final":
        kw = eval("dict(" + (sys.argv[3] if len(sys.argv) > 3 else "") + ")")
        t, g, tot = gen(**kw)
        open(sys.argv[2], "w").write(t)
        print(g, "regs", tot)
    else:
        cfgs = eval(open(sys.argv[1]).read())
        specs = []
        for c in cfgs:
            t, g, tot = gen(meta=True, **c)
            n = c["name"]
            open(n + ".s", "w").write(t)
            subprocess.check_call(["clang", "-x", "assembler", "-target", "amdgcn-amd-amdhsa", "-mcpu=gfx950", n + ".s", "-o", n + ".co"])
            specs.append(f"{n}.co:{n}:{g}")
            print(n, "regs", tot, file=sys.stderr)
        open("specs.txt", "w").write(" ".join(specs))
```

```python
import struct, sys, subprocess, argparse

def f2u(x): return struct.unpack("<I", struct.pack("<f", x))[0]
def f32(x): return struct.unpack("<f", struct.pack("<f", x))[0]
SCALE = f32(128.0 ** -0.25)
LOG2E = 1.4426950408889634

HEADER = """; Kernarg layout for this problem (56 bytes, ptrs only, base s[0:1]):
"""
META = """
.amdgpu_metadata
---
amdhsa.version: [1, 2]
amdhsa.kernels:
  - .name: {name}
    .symbol: {name}.kd
    .kernarg_segment_size: 56
    .kernarg_segment_align: 8
    .group_segment_fixed_size: 0
    .private_segment_fixed_size: 0
    .wavefront_size: 64
    .sgpr_count: 102
    .vgpr_count: {vgpr}
    .max_flat_workgroup_size: {wg}
    .args:
      - {{.name: kernargs, .size: 56, .offset: 0, .value_kind: by_value}}
...
.end_amdgpu_metadata
"""

class G:
    def __init__(s): s.L = []
    def __call__(s, t):
        for line in t.split("\n"):
            line = line.strip()
            if line: s.L.append(("" if line.endswith(":") else "    ") + line)
    def text(s): return "\n".join(s.L) + "\n"

def vr(b, n=4): return f"v[{b}:{b+n-1}]"
def ar(b, n=4): return f"a[{b}:{b+n-1}]"

def gen(name="standalone__linear_kernel_rfa__decode_kernel", W=8, depth=4, mimic=True, pk=False,
        flags="nt", stamp=False, meta=False, nocompute=False, dbgstamp=False):
    NWG = 256
    ROWS_WG = 4096
    TILES_WAVE = ROWS_WG // 16 // W
    assert TILES_WAVE % depth == 0
    A = G()
    sK, sV, sO, sQ = 8, 12, 16, 20
    s_wave, s_head, s_off, s_cnt = 3, 24, 25, 26
    s_out, s_dbg, s_ws = 28, 30, 32
    s_scale, s_c1, s_tmp, s_tmp2 = 34, 36, 38, 39
    s_t0, s_t1, s_ta, s_tb, s_tc = 40, 42, 44, 46, 48
    v_lane = 0
    v_ko, v_vo = 1, 2
    v_one, v_nh, v_den, v_p0, v_p1 = 3, 4, 5, 6, 7
    v_sel = 8
    v_pq = 12
    v_c0 = 20
    v_acc = 24
    v_ksq = 28
    v_w = 32
    v_P = 36
    v_D = 44
    v_A = 44
    v_t = 60
    v_K = 64
    nv = v_K + depth * 16
    acc_off = (nv + 3) // 4 * 4
    a_om = 0
    a_V = 64
    na = a_V + depth * 16
    total = acc_off + na
    lds = W * 512 + 64

    A(f"s_cmp_ge_u32 s2, {NWG}")
    A("s_cbranch_scc1 L_done")
    A("s_load_dwordx8 s[4:11], s[0:1], 0")
    A(f"s_load_dwordx4 s[{s_out}:{s_out+3}], s[0:1], 32")
    A(f"s_load_dwordx2 s[{s_ws}:{s_ws+1}], s[0:1], 48")
    if stamp: A(f"s_memrealtime s[{s_t0}:{s_t0+1}]")
    if dbgstamp: A(f"s_memrealtime s[{s_tb}:{s_tb+1}]")
    A(f"v_lshrrev_b32 v{v_t}, 6, v0")
    A(f"v_and_b32 v{v_lane}, 63, v0")
    A(f"v_readfirstlane_b32 s{s_wave}, v{v_t}")
    A(f"v_and_b32 v{v_t+1}, 15, v{v_lane}")
    A(f"v_lshrrev_b32 v{v_t+2}, 4, v{v_lane}")
    A(f"v_lshlrev_b32 v{v_ko}, 8, v{v_t+1}")
    A(f"v_lshl_add_u32 v{v_ko}, v{v_t+2}, 4, v{v_ko}")
    A(f"v_lshlrev_b32 v{v_vo}, 10, v{v_t+2}")
    A(f"v_lshl_add_u32 v{v_vo}, v{v_t+1}, 4, v{v_vo}")
    A(f"v_lshlrev_b32 v{v_t+3}, 4, v{v_t+2}")
    A(f"s_lshr_b32 s{s_head}, s2, 1")
    A(f"s_lshl_b32 s{s_off}, s{s_wave}, 12")
    A(f"s_lshr_b32 s{s_tmp}, s2, 12")
    A(f"s_lshl_b32 s{s_tmp2}, s2, 20")
    A("s_waitcnt lgkmcnt(0)")
    A(f"""s_mov_b32 s{sQ}, s4
    s_and_b32 s{sQ+1}, s5, 0xffff
    s_mov_b32 s{sQ+2}, 32768
    s_mov_b32 s{sQ+3}, 0x20000
    s_mov_b32 s{sO}, s10
    s_and_b32 s{sO+1}, s11, 0xffff
    s_mov_b32 s{sO+2}, 16384
    s_mov_b32 s{sO+3}, 0x20000
    s_add_u32 s{sV}, s8, s{s_tmp2}
    s_addc_u32 s{sV+1}, s9, 0
    s_and_b32 s{sV+1}, s{sV+1}, 0xffff
    s_mov_b32 s{sV+2}, {ROWS_WG*256}
    s_mov_b32 s{sV+3}, 0x20000
    s_add_u32 s{sK}, s6, s{s_tmp2}
    s_addc_u32 s{sK+1}, s7, 0
    s_and_b32 s{sK+1}, s{sK+1}, 0xffff
    s_mov_b32 s{sK+2}, {ROWS_WG*256}
    s_mov_b32 s{sK+3}, 0x20000""")
    A(f"s_lshl_b32 s{s_tmp}, s{s_head}, 8")
    qreg = v_pq
    for t in range(4):
        A(f"buffer_load_dwordx4 {vr(qreg+4*t)}, v{v_t+3}, s[{sQ}:{sQ+3}], s{s_tmp} offen offset:{64*t}")
    for mt in range(4):
        if mt: A(f"s_mov_b32 s{s_tmp2}, {4096*mt}")
        so = f"s{s_tmp2}" if mt else "0"
        for t in range(4):
            A(f"buffer_load_dwordx4 {ar(a_om+16*mt+4*t)}, v{v_ko}, s[{sO}:{sO+3}], {so} offen offset:{64*t}")

    def issueK(st):
        for t in range(4):
            A(f"buffer_load_dwordx4 {vr(v_K+16*st+4*t)}, v{v_ko}, s[{sK}:{sK+3}], s{s_off} offen offset:{64*t} {flags}")
    def issueV(st):
        for r in range(4):
            A(f"buffer_load_dwordx4 {ar(a_V+16*st+4*r)}, v{v_vo}, s[{sV}:{sV+3}], s{s_off} offen offset:{256*r} {flags}")
    STEP = W * 4096
    for st in range(depth):
        issueK(st); issueV(st)
        A(f"s_add_u32 s{s_off}, s{s_off}, {STEP}")
    A(f"s_mov_b32 s{s_scale}, {hex(f2u(SCALE))}")
    A(f"s_mov_b32 s{s_scale+1}, {hex(f2u(SCALE))}")
    c1 = LOG2E if mimic else SCALE * LOG2E
    A(f"s_mov_b32 s{s_c1}, {hex(f2u(c1))}")
    A(f"s_mov_b32 s{s_c1+1}, {hex(f2u(c1))}")
    A(f"v_mov_b32 v{v_den}, 0")
    A(f"v_mov_b32 v{v_p0}, 0x0c0c0302")
    A(f"v_mov_b32 v{v_p1}, 0x03020c0c")
    for q in range(4):
        A(f"v_mov_b32 v{v_sel+q}, 0x0c0c0c0c")
        A(f"v_cmp_eq_u32 vcc, {2*q}, v{v_t+1}")
        A("s_nop 1")
        A(f"v_cndmask_b32 v{v_sel+q}, v{v_sel+q}, v{v_p0}, vcc")
        A(f"v_cmp_eq_u32 vcc, {2*q+1}, v{v_t+1}")
        A("s_nop 1")
        A(f"v_cndmask_b32 v{v_sel+q}, v{v_sel+q}, v{v_p1}, vcc")
    A(f"v_mov_b32 v{v_one}, 1.0")

    def scale_regs(base, n):
        for i in range(n):
            t = v_t + 2 * (i % 2)
            x = base + i
            A(f"v_lshlrev_b32 v{t}, 16, v{x}")
            A(f"v_and_b32 v{t+1}, 0xffff0000, v{x}")
            if pk:
                A(f"v_pk_mul_f32 {vr(t,2)}, {vr(t,2)}, s[{s_scale}:{s_scale+1}]")
            else:
                A(f"v_mul_f32 v{t}, s{s_scale}, v{t}")
                A(f"v_mul_f32 v{t+1}, s{s_scale}, v{t+1}")
            A(f"v_cvt_pk_bf16_f32 v{x}, v{t}, v{t+1}")
    def sumsq(base):
        A(f"v_dot2_f32_bf16 v{v_p0}, v{base}, v{base}, 0")
        A(f"v_dot2_f32_bf16 v{v_p1}, v{base+1}, v{base+1}, 0")
        for i in range(2, 16):
            p = v_p0 if i % 2 == 0 else v_p1
            A(f"v_dot2_f32_bf16 v{p}, v{base+i}, v{base+i}, v{p}")
        A("s_nop 2")
        A(f"v_add_f32 v{v_p0}, v{v_p0}, v{v_p1}")
    def proj(base):
        for t in range(4):
            for mt in range(4):
                c = "0" if t == 0 else vr(v_D + 4 * mt)
                A(f"v_mfma_f32_16x16x32_bf16 {vr(v_D+4*mt)}, {ar(a_om+16*mt+4*t)}, {vr(base+4*t)}, {c}")

    nloads_after = depth * 8
    A(f"s_waitcnt vmcnt({min(63, nloads_after + 16)})")
    scale_regs(qreg, 16)
    sumsq(qreg)
    A("s_nop 1")
    A(f"v_mfma_f32_16x16x4_f32 {vr(v_ksq)}, v{v_one}, v{v_p0}, 0")
    A(f"s_waitcnt vmcnt({min(63, nloads_after)})")
    if stamp: A(f"s_memrealtime s[{s_ta}:{s_ta+1}]")
    proj(qreg)
    A("s_nop 7")
    A(f"v_cvt_pk_bf16_f32 v{v_nh}, 0, v{v_ksq}")
    A(f"v_mul_f32 v{v_nh}, -0.5, v{v_nh}")
    A(f"s_mov_b32 s{s_tmp}, {hex(f2u(LOG2E))}")
    A(f"s_mov_b32 s{s_tmp2}, {hex(f2u(1e-6))}")
    A(f"v_mov_b32 v{v_p1}, 0")
    for i in range(16):
        x = v_D + i
        A(f"v_cvt_pk_bf16_f32 v{x}, 0, v{x}")
        A(f"v_add_f32 v{x}, v{x}, v{v_nh}")
        A(f"v_cvt_pk_bf16_f32 v{x}, 0, v{x}")
        A(f"v_mul_f32 v{x}, s{s_tmp}, v{x}")
        A(f"v_exp_f32 v{x}, v{x}")
        A("s_nop 0")
        A(f"v_cvt_pk_bf16_f32 v{x}, 0, v{x}")
        A(f"v_mul_f32 v{x}, 0x3e000000, v{x}")
        A(f"v_add_f32 v{x}, s{s_tmp2}, v{x}")
        A(f"v_cvt_pk_bf16_f32 v{x}, 0, v{x}")
        A(f"v_add_f32 v{v_p1}, v{v_p1}, v{x}")
        A(f"v_mul_f32 v{x}, 0x3e000000, v{x}")
    for i in range(8):
        A(f"v_cvt_pk_bf16_f32 v{v_pq+i}, v{v_D+2*i}, v{v_D+2*i+1}")
    A(f"v_mul_f32 v{v_p1}, s{s_tmp2}, v{v_p1}")
    A("s_nop 1")
    A(f"v_mfma_f32_16x16x4_f32 {vr(v_c0)}, v{v_one}, v{v_p1}, 0")
    for r in range(4): A(f"v_mov_b32 v{v_acc+r}, 0")
    if not mimic:
        A(f"v_mov_b32 v{v_one}, {hex(f2u(-0.5*SCALE*SCALE*LOG2E))}")
    A("s_nop 7")
    A("s_nop 3")

    A(f"s_mov_b32 s{s_cnt}, {TILES_WAVE // depth}")
    if stamp: A(f"s_memrealtime s[{s_tb}:{s_tb+1}]\ns_mov_b32 s{s_tc}, 0")
    A(".p2align 6")
    A("L_loop:")
    for st in range(depth):
        kb = v_K + 16 * st
        vb = a_V + 16 * st
        A(f"s_waitcnt vmcnt({min(63, depth*8 - 4)})")
        if nocompute:
            issueK(st)
            A(f"s_waitcnt vmcnt({min(63, depth*8 - 4)})")
            issueV(st)
            A(f"s_add_u32 s{s_off}, s{s_off}, {STEP}")
            continue
        if mimic: scale_regs(kb, 16)
        sumsq(kb)
        A("s_nop 1")
        A(f"v_mfma_f32_16x16x4_f32 {vr(v_ksq)}, v{v_one}, v{v_p0}, 0")
        proj(kb)
        issueK(st)
        if mimic:
            A(f"v_cvt_pk_bf16_f32 v{v_nh}, 0, v{v_ksq}")
            A(f"v_mul_f32 v{v_nh}, -0.5, v{v_nh}")
            A("s_nop 1")
        else:
            A("s_nop 3")
        for mt in range(4):
            xs = [v_D + 4 * mt + r for r in range(4)]
            if mimic:
                for x in xs: A(f"v_cvt_pk_bf16_f32 v{x}, 0, v{x}")
                if pk:
                    for h in range(2): A(f"v_pk_add_f32 {vr(xs[2*h],2)}, {vr(xs[2*h],2)}, {vr(v_nh-0,2)} op_sel_hi:[1,0]")
                else:
                    for x in xs: A(f"v_add_f32 v{x}, v{x}, v{v_nh}")
                for x in xs: A(f"v_cvt_pk_bf16_f32 v{x}, 0, v{x}")
                if pk:
                    for h in range(2): A(f"v_pk_mul_f32 {vr(xs[2*h],2)}, {vr(xs[2*h],2)}, s[{s_c1}:{s_c1+1}]")
                else:
                    for x in xs: A(f"v_mul_f32 v{x}, s{s_c1}, v{x}")
            else:
                for x in xs: A(f"v_fma_f32 v{x}, v{x}, s{s_c1}, v{v_ksq}")
            for x in xs: A(f"v_exp_f32 v{x}, v{x}")
            A("s_nop 0")
            A(f"v_cvt_pk_bf16_f32 v{v_P+2*mt}, v{xs[0]}, v{xs[1]}")
            A(f"v_cvt_pk_bf16_f32 v{v_P+2*mt+1}, v{xs[2]}, v{xs[3]}")
        A("s_nop 1")
        A(f"v_mfma_f32_16x16x32_bf16 {vr(v_w)}, {vr(v_P)}, {vr(v_pq)}, {vr(v_c0)}")
        A(f"v_mfma_f32_16x16x32_bf16 {vr(v_w)}, {vr(v_P+4)}, {vr(v_pq+4)}, {vr(v_w)}")
        A("s_nop 7")
        for r in range(4): A(f"v_cvt_pk_bf16_f32 v{v_w+r}, 0, v{v_w+r}")
        for r in range(4):
            for q in range(4):
                A(f"v_perm_b32 v{v_A+4*r+q}, v{v_w+r}, v{v_w+r}, v{v_sel+q}")
        for r in range(4): A(f"v_add_f32 v{v_den}, v{v_den}, v{v_w+r}")
        A(f"s_waitcnt vmcnt({min(63, depth*8 - 4)})")
        for r in range(4):
            A(f"v_mfma_f32_16x16x32_bf16 {vr(v_acc)}, {vr(v_A+4*r)}, {ar(vb+4*r)}, {vr(v_acc)}")
        issueV(st)
        A(f"s_add_u32 s{s_off}, s{s_off}, {STEP}")
    if stamp:
        A(f"s_cmp_lg_u32 s{s_tc}, 0\ns_cbranch_scc1 L_st1\ns_memrealtime s[{s_tc}:{s_tc+1}]\ns_waitcnt lgkmcnt(0)\nL_st1:")
    A(f"s_sub_u32 s{s_cnt}, s{s_cnt}, 1")
    A(f"s_cmp_lg_u32 s{s_cnt}, 0")
    A("s_cbranch_scc1 L_loop")

    A(f"v_mov_b32 v{v_one}, 1.0")
    A("s_nop 1")
    A(f"v_mfma_f32_16x16x4_f32 {vr(v_ksq)}, v{v_one}, v{v_den}, 0")
    A(f"v_and_b32 v{v_t+1}, 15, v{v_lane}")
    A(f"v_lshrrev_b32 v{v_t+2}, 4, v{v_lane}")
    A(f"v_lshlrev_b32 v{v_t}, 5, v{v_t+1}")
    A(f"v_lshl_add_u32 v{v_t}, v{v_t+2}, 4, v{v_t}")
    A(f"s_lshl_b32 s{s_tmp}, s{s_wave}, 9")
    A(f"v_add_u32 v{v_t}, s{s_tmp}, v{v_t}")
    A(f"s_lshl_b32 s{s_tmp}, s{s_wave}, 2")
    A(f"s_add_u32 s{s_tmp}, s{s_tmp}, {W*512}")
    A(f"v_mov_b32 v{v_t+3}, s{s_tmp}")
    A("s_nop 4")
    A(f"s_mov_b32 exec_hi, 0")
    A(f"ds_write_b128 v{v_t}, {vr(v_acc)}")
    A(f"s_mov_b64 exec, 1")
    A(f"ds_write_b32 v{v_t+3}, v{v_ksq}")
    A(f"s_mov_b64 exec, -1")
    A("s_waitcnt vmcnt(0) lgkmcnt(0)")
    if stamp:
        A(f"s_memrealtime s[{s_t1}:{s_t1+1}]")
        A("s_waitcnt lgkmcnt(0)")
        A(f"s_mul_i32 s{s_tmp}, s2, {W}\ns_add_u32 s{s_tmp}, s{s_tmp}, s{s_wave}\ns_lshl_b32 s{s_tmp}, s{s_tmp}, 5")
        A(f"s_add_u32 s{s_tmp}, s{s_tmp}, 0x100000")
        A(f"s_getreg_b32 s{s_tmp2}, hwreg(HW_REG_XCC_ID)")
        A(f"v_mov_b32 v{v_D}, s{s_t0}\nv_mov_b32 v{v_D+1}, s{s_t1}\nv_mov_b32 v{v_D+2}, s{s_tmp2}\nv_mov_b32 v{v_D+3}, s{s_ta}\nv_mov_b32 v{v_D+4}, s{s_tb}\nv_mov_b32 v{v_D+5}, s{s_tc}\nv_mov_b32 v{v_D+8}, s{s_tmp}")
        A(f"s_mov_b64 exec, 1")
        A(f"global_store_dwordx4 v{v_D+8}, {vr(v_D)}, s[{s_ws}:{s_ws+1}]")
        A(f"global_store_dwordx4 v{v_D+8}, {vr(v_D+4)}, s[{s_ws}:{s_ws+1}] offset:16")
        A(f"s_mov_b64 exec, -1")
    A("s_barrier")
    A(f"s_cmp_lg_u32 s{s_wave}, 0")
    A("s_cbranch_scc1 L_done")
    A(f"v_lshlrev_b32 v{v_t}, 3, v{v_lane}")
    for w in range(W):
        A(f"ds_read_b64 {vr(v_D+2*w,2)}, v{v_t} offset:{512*w}")
    A(f"v_mov_b32 v{v_t+1}, {W*512}")
    for h in range(W // 4):
        A(f"ds_read_b128 {vr(v_K+4*h)}, v{v_t+1} offset:{16*h}")
    A("s_waitcnt lgkmcnt(0)")
    for w in range(1, W):
        A(f"v_add_f32 v{v_D}, v{v_D}, v{v_D+2*w}")
        A(f"v_add_f32 v{v_D+1}, v{v_D+1}, v{v_D+2*w+1}")
        A(f"v_add_f32 v{v_K}, v{v_K}, v{v_K+w}")
    A(f"s_lshl_b32 s{s_tmp}, s2, 10")
    A(f"v_add_u32 v{v_t+1}, s{s_tmp}, v{v_t}")
    A(f"global_store_dwordx2 v{v_t+1}, {vr(v_D,2)}, s[{s_ws}:{s_ws+1}] sc0 sc1")
    A(f"v_mov_b32 v{v_t+2}, s{s_tmp}")
    A(f"s_mov_b64 exec, 1")
    A(f"global_store_dword v{v_t+2}, v{v_K}, s[{s_ws}:{s_ws+1}] offset:512 sc0 sc1")
    A(f"s_and_b32 s{s_tmp2}, s{s_head}, 0x7c")
    A(f"s_add_u32 s{s_tmp2}, s{s_tmp2}, 128")
    A(f"v_mov_b32 v{v_t+3}, s{s_tmp2}")
    A(f"s_and_b32 s{s_tmp2}, s{s_head}, 3")
    A(f"s_lshl_b32 s{s_tmp2}, s{s_tmp2}, 3")
    A(f"s_lshl_b32 s{s_cnt}, 1, s{s_tmp2}")
    A(f"v_mov_b32 v{v_p0}, s{s_cnt}")
    A("s_waitcnt vmcnt(0)")
    A(f"global_atomic_add v{v_p1}, v{v_t+3}, v{v_p0}, s[{s_dbg}:{s_dbg+1}] sc0")
    A("s_waitcnt vmcnt(0)")
    A(f"v_readfirstlane_b32 s{s_cnt}, v{v_p1}")
    A(f"s_mov_b64 exec, -1")
    A(f"s_lshr_b32 s{s_cnt}, s{s_cnt}, s{s_tmp2}")
    A(f"s_and_b32 s{s_cnt}, s{s_cnt}, 0xff")
    A(f"s_cmp_eq_u32 s{s_cnt}, 0")
    A("s_cbranch_scc1 L_fin" )
    A(f"v_xor_b32 v{v_t+1}, 1024, v{v_t+1}")
    A(f"v_xor_b32 v{v_t+2}, 1024, v{v_t+2}")
    A(f"global_load_dwordx2 {vr(v_D+2,2)}, v{v_t+1}, s[{s_ws}:{s_ws+1}] sc0 sc1")
    A(f"global_load_dword v{v_K+1}, v{v_t+2}, s[{s_ws}:{s_ws+1}] offset:512 sc0 sc1")
    A(f"s_lshl_b32 s{s_tmp}, s{s_head}, 8")
    A(f"v_lshlrev_b32 v{v_t}, 2, v{v_lane}")
    A(f"v_add_u32 v{v_t}, s{s_tmp}, v{v_t}")
    A("s_waitcnt vmcnt(0)")
    A(f"v_add_f32 v{v_D}, v{v_D}, v{v_D+2}")
    A(f"v_add_f32 v{v_D+1}, v{v_D+1}, v{v_D+3}")
    A(f"v_add_f32 v{v_K}, v{v_K}, v{v_K+1}")
    A(f"v_add_f32 v{v_K}, {hex(f2u(1e-6))}, v{v_K}")
    den = v_K
    for i in range(2):
        n = v_D + i
        a, b, c, d_, e = v_P, v_P+1, v_P+2, v_P+3, v_P+4
        A(f"v_div_scale_f32 v{a}, s[{s_t0}:{s_t0+1}], v{den}, v{den}, v{n}")
        A(f"v_rcp_f32 v{b}, v{a}")
        A(f"v_div_scale_f32 v{c}, vcc, v{n}, v{den}, v{n}")
        A(f"v_fma_f32 v{d_}, -v{a}, v{b}, 1.0")
        A(f"v_fma_f32 v{b}, v{d_}, v{b}, v{b}")
        A(f"v_mul_f32 v{d_}, v{c}, v{b}")
        A(f"v_fma_f32 v{e}, -v{a}, v{d_}, v{c}")
        A(f"v_fma_f32 v{d_}, v{e}, v{b}, v{d_}")
        A(f"v_fma_f32 v{a}, -v{a}, v{d_}, v{c}")
        A("s_nop 1")
        A(f"v_div_fmas_f32 v{a}, v{a}, v{b}, v{d_}")
        A(f"v_div_fixup_f32 v{n}, v{a}, v{den}, v{n}")
    A(f"v_cvt_pk_bf16_f32 v{v_D}, v{v_D}, v{v_D+1}")
    A(f"global_store_dword v{v_t}, v{v_D}, s[{s_out}:{s_out+1}]")
    A("L_fin:")
    if dbgstamp:
        A("s_waitcnt vmcnt(0)")
        A(f"s_memrealtime s[{s_t1}:{s_t1+1}]")
        A("s_waitcnt lgkmcnt(0)")
        A(f"s_not_b32 s{s_tmp}, s{s_tb}")
        A(f"v_mov_b32 v{v_D+1}, s{s_t1}\nv_mov_b32 v{v_D+4}, 0\nv_mov_b32 v{v_D}, s{s_tmp}")
        A(f"s_mov_b64 exec, 1")
        A(f"global_atomic_umax v{v_D+4}, v{v_D+1}, s[{s_dbg}:{s_dbg+1}] offset:8")
        A(f"global_atomic_umax v{v_D+4}, v{v_D}, s[{s_dbg}:{s_dbg+1}]")
    if stamp:
        A("s_waitcnt vmcnt(0)")
        A(f"s_memrealtime s[{s_t1}:{s_t1+1}]")
        A("s_waitcnt lgkmcnt(0)")
        A(f"s_lshl_b32 s{s_tmp}, s2, 4")
        A(f"s_add_u32 s{s_tmp}, s{s_tmp}, 0x180000")
        A(f"v_mov_b32 v{v_D}, s{s_cnt}\nv_mov_b32 v{v_D+1}, s{s_t1}\nv_mov_b32 v{v_D+4}, s{s_tmp}")
        A(f"s_mov_b64 exec, 1")
        A(f"global_store_dwordx2 v{v_D+4}, {vr(v_D,2)}, s[{s_ws}:{s_ws+1}]")
    A("L_done:")
    A("s_endpgm")

    out = HEADER + f"; @launch grid=({NWG},1,1) block=({W*64},1,1) lds={lds}\n"
    out += f'.amdgcn_target "amdgcn-amd-amdhsa--gfx950"\n.text\n.globl {name}\n.p2align 8\n.type {name},@function\n{name}:\n'
    out += A.text()
    out += f""".section .rodata,"a"
.p2align 6
.amdhsa_kernel {name}
  .amdhsa_next_free_vgpr {total}
  .amdhsa_next_free_sgpr 56
  .amdhsa_accum_offset {acc_off}
  .amdhsa_group_segment_fixed_size 0
  .amdhsa_kernarg_size 56
  .amdhsa_user_sgpr_count 2
  .amdhsa_user_sgpr_kernarg_segment_ptr 1
  .amdhsa_system_sgpr_workgroup_id_x 1
  .amdhsa_float_denorm_mode_32 3
.end_amdhsa_kernel
"""
    if meta: out += META.format(name=name, vgpr=total, wg=W*64)
    return out, f"{NWG}:{W*64}:{lds}", total

if __name__ == "__main__":
    if sys.argv[1] == "final":
        kw = eval("dict(" + (sys.argv[3] if len(sys.argv) > 3 else "") + ")")
        t, g, tot = gen(**kw)
        open(sys.argv[2], "w").write(t)
        print(g, "regs", tot)
    else:
        cfgs = eval(open(sys.argv[1]).read())
        specs = []
        for c in cfgs:
            t, g, tot = gen(meta=True, **c)
            n = c["name"]
            open(n + ".s", "w").write(t)
            subprocess.check_call(["clang", "-x", "assembler", "-target", "amdgcn-amd-amdhsa", "-mcpu=gfx950", n + ".s", "-o", n + ".co"])
            specs.append(f"{n}.co:{n}:{g}")
            print(n, "regs", tot, file=sys.stderr)
        open("specs.txt", "w").write(" ".join(specs))
```

```python
import struct, sys, subprocess, argparse

def f2u(x): return struct.unpack("<I", struct.pack("<f", x))[0]
def f32(x): return struct.unpack("<f", struct.pack("<f", x))[0]
SCALE = f32(128.0 ** -0.25)
LOG2E = 1.4426950408889634

HEADER = """; Kernarg layout for this problem (56 bytes, ptrs only, base s[0:1]):
;   offset  48: d_ws      1073741824 bytes workspace (unspecified values whenever your kernel or launch list starts; a list's later launches find what earlier ones wrote)
"""
META = """
.amdgpu_metadata
---
amdhsa.version: [1, 2]
amdhsa.kernels:
  - .name: {name}
    .symbol: {name}.kd
    .kernarg_segment_size: 56
    .kernarg_segment_align: 8
    .group_segment_fixed_size: 0
    .private_segment_fixed_size: 0
    .wavefront_size: 64
    .sgpr_count: 102
    .vgpr_count: {vgpr}
    .max_flat_workgroup_size: {wg}
    .args:
      - {{.name: kernargs, .size: 56, .offset: 0, .value_kind: by_value}}
...
.end_amdgpu_metadata
"""

class G:
    def __init__(s): s.L = []
    def __call__(s, t):
        for line in t.split("\n"):
            line = line.strip()
            if line: s.L.append(("" if line.endswith(":") else "    ") + line)
    def text(s): return "\n".join(s.L) + "\n"

def vr(b, n=4): return f"v[{b}:{b+n-1}]"
def ar(b, n=4): return f"a[{b}:{b+n-1}]"

def gen(name="standalone__linear_kernel_rfa__decode_kernel", W=8, depth=4, mimic=True, pk=False,
        flags="nt", stamp=False, meta=False, nocompute=False, dbgstamp=False, omlds=True, omred=True, peel=True, xorwg=0, kfirst=True, sbase=0, wgmap=None):
    NWG = 256
    ROWS_WG = 4096
    TILES_WAVE = ROWS_WG // 16 // W
    assert TILES_WAVE % depth == 0
    A = G()
    sK, sV, sO, sQ = 8, 12, 16, 20
    s_wave, s_head, s_off, s_cnt = 3, 24, 25, 26
    s_out, s_dbg, s_ws = 28, 30, 32
    s_scale, s_c1, s_tmp, s_tmp2 = 34, 36, 38, 39
    s_t0, s_t1, s_ta, s_tb, s_tc = 40, 42, 44, 46, 48
    v_lane = 0
    v_ko, v_vo = 1, 2
    v_one, v_nh, v_den, v_p0, v_p1 = 3, 4, 5, 6, 7
    v_sel = 8
    v_pq = 12
    v_c0 = 20
    v_acc = 24
    v_ksq = 28
    v_w = 32
    v_P = 36
    v_D = 44
    v_A = 44
    v_t = 60
    v_K = 64
    nv = v_K + depth * 16
    acc_off = (nv + 3) // 4 * 4
    a_om = 0
    a_V = 64
    na = a_V + depth * 16
    total = acc_off + na
    RED = 16384 if omlds else 0
    lds = RED + W * 512 + 64

    A(f"s_cmp_ge_u32 s2, {NWG}")
    A("s_cbranch_scc1 L_done")
    A("s_load_dwordx8 s[4:11], s[0:1], 0")
    A(f"s_load_dwordx4 s[{s_out}:{s_out+3}], s[0:1], 32")
    A(f"s_load_dwordx2 s[{s_ws}:{s_ws+1}], s[0:1], 48")
    if stamp: A(f"s_memrealtime s[{s_t0}:{s_t0+1}]")
    if dbgstamp: A(f"s_memrealtime s[{s_tb}:{s_tb+1}]")
    A(f"v_lshrrev_b32 v{v_t}, 6, v0")
    A(f"v_and_b32 v{v_lane}, 63, v0")
    A(f"v_readfirstlane_b32 s{s_wave}, v{v_t}")
    A(f"v_and_b32 v{v_t+1}, 15, v{v_lane}")
    A(f"v_lshrrev_b32 v{v_t+2}, 4, v{v_lane}")
    A(f"v_lshlrev_b32 v{v_ko}, 8, v{v_t+1}")
    A(f"v_lshl_add_u32 v{v_ko}, v{v_t+2}, 4, v{v_ko}")
    A(f"v_lshlrev_b32 v{v_vo}, 10, v{v_t+2}")
    A(f"v_lshl_add_u32 v{v_vo}, v{v_t+1}, 4, v{v_vo}")
    A(f"v_lshlrev_b32 v{v_t+3}, 4, v{v_t+2}")
    if stamp: A(f"s_mov_b32 s{s_tc+2}, s2")
    if xorwg: A(f"s_xor_b32 s2, s2, {xorwg}")
    if wgmap == "rot":
        A(f"s_lshr_b32 s{s_tmp}, s2, 3")
        A(f"s_add_u32 s{s_tmp}, s{s_tmp}, s2")
        A(f"s_and_b32 s{s_tmp}, s{s_tmp}, 7")
        A(f"s_andn2_b32 s2, s2, 7")
        A(f"s_or_b32 s2, s2, s{s_tmp}")
    elif wgmap == "blk":
        A(f"s_lshr_b32 s{s_tmp}, s2, 3")
        A(f"s_and_b32 s2, s2, 7")
        A(f"s_lshl_b32 s2, s2, 5")
        A(f"s_or_b32 s2, s2, s{s_tmp}")
    A(f"s_lshr_b32 s{s_head}, s2, 1")
    A(f"s_lshl_b32 s{s_off}, s{s_wave}, 12")
    A(f"s_lshr_b32 s{s_tmp}, s2, 12")
    A(f"s_lshl_b32 s{s_tmp2}, s2, 20")
    A("s_waitcnt lgkmcnt(0)")
    A(f"""s_mov_b32 s{sQ}, s4
    s_and_b32 s{sQ+1}, s5, 0xffff
    s_mov_b32 s{sQ+2}, 32768
    s_mov_b32 s{sQ+3}, 0x20000
    s_mov_b32 s{sO}, s10
    s_and_b32 s{sO+1}, s11, 0xffff
    s_mov_b32 s{sO+2}, 16384
    s_mov_b32 s{sO+3}, 0x20000
    s_add_u32 s{sV}, s8, s{s_tmp2}
    s_addc_u32 s{sV+1}, s9, 0
    s_and_b32 s{sV+1}, s{sV+1}, 0xffff
    s_mov_b32 s{sV+2}, {ROWS_WG*256}
    s_mov_b32 s{sV+3}, 0x20000
    s_add_u32 s{sK}, s6, s{s_tmp2}
    s_addc_u32 s{sK+1}, s7, 0
    s_and_b32 s{sK+1}, s{sK+1}, 0xffff
    s_mov_b32 s{sK+2}, {ROWS_WG*256}
    s_mov_b32 s{sK+3}, 0x20000""")
    def issueK(st):
        for t in range(4):
            A(f"buffer_load_dwordx4 {vr(v_K+16*st+4*t)}, v{v_ko}, s[{sK}:{sK+3}], s{s_off} offen offset:{64*t} {flags}")
    def issueV(st):
        for r in range(4):
            A(f"buffer_load_dwordx4 {ar(a_V+16*st+4*r)}, v{v_vo}, s[{sV}:{sV+3}], s{s_off} offen offset:{256*r} {flags}")
    STEP = W * 4096
    qreg = v_pq
    npre = 1 if (kfirst and omred) else 0
    for st in range(npre):
        issueK(st); issueV(st)
        A(f"s_add_u32 s{s_off}, s{s_off}, {STEP}")
    if omlds:
        for i in range(4):
            A(f"v_add_u32 v{v_ksq+i}, {4*i}, v{v_t+2}")
            A(f"v_xor_b32 v{v_ksq+i}, v{v_ksq+i}, v{v_t+1}")
            A(f"v_lshlrev_b32 v{v_ksq+i}, 4, v{v_ksq+i}")
            A(f"v_lshl_add_u32 v{v_ksq+i}, v{v_t+2}, 8, v{v_ksq+i}")
        if omred:
            for w in range(4):
                A(f"s_mov_b32 s{s_tmp2}, {4096*w}")
                A(f"s_mov_b32 m0, s{s_tmp2}")
                A("s_nop 0")
                for i in range(4):
                    A(f"buffer_load_dwordx4 v{v_ksq+i}, s[{sO}:{sO+3}], s{s_tmp2} offen offset:{1024*i} lds")
        else:
            A(f"s_cmp_ge_u32 s{s_wave}, 4")
            A("s_cbranch_scc1 L_noom")
            A(f"s_lshl_b32 s{s_tmp2}, s{s_wave}, 12")
            A(f"s_mov_b32 m0, s{s_tmp2}")
            A("s_nop 0")
            for i in range(4):
                A(f"buffer_load_dwordx4 v{v_ksq+i}, s[{sO}:{sO+3}], s{s_tmp2} offen offset:{1024*i} lds")
            A("L_noom:")
    else:
        for mt in range(4):
            if mt: A(f"s_mov_b32 s{s_tmp2}, {4096*mt}")
            so = f"s{s_tmp2}" if mt else "0"
            for t in range(4):
                A(f"buffer_load_dwordx4 {ar(a_om+16*mt+4*t)}, v{v_ko}, s[{sO}:{sO+3}], {so} offen offset:{64*t}")
    A(f"s_lshl_b32 s{s_tmp}, s{s_head}, 8")
    for t in range(4):
        A(f"buffer_load_dwordx4 {vr(qreg+4*t)}, v{v_t+3}, s[{sQ}:{sQ+3}], s{s_tmp} offen offset:{64*t}")
    if omlds and W > 4 and not omred:
        A(f"s_cmp_lt_u32 s{s_wave}, 4")
        A("s_cbranch_scc1 L_b1")
        A("s_barrier")
        A("L_b1:")
    for st in range(npre, depth):
        issueK(st); issueV(st)
        A(f"s_add_u32 s{s_off}, s{s_off}, {STEP}")
    A(f"s_mov_b32 s{s_scale}, {hex(f2u(SCALE))}")
    A(f"s_mov_b32 s{s_scale+1}, {hex(f2u(SCALE))}")
    c1 = LOG2E if mimic else SCALE * LOG2E
    A(f"s_mov_b32 s{s_c1}, {hex(f2u(c1))}")
    A(f"s_mov_b32 s{s_c1+1}, {hex(f2u(c1))}")
    A(f"v_mov_b32 v{v_den}, 0")
    A(f"v_mov_b32 v{v_p0}, 0x0c0c0302")
    A(f"v_mov_b32 v{v_p1}, 0x03020c0c")
    for q in range(4):
        A(f"v_mov_b32 v{v_sel+q}, 0x0c0c0c0c")
        A(f"v_cmp_eq_u32 vcc, {2*q}, v{v_t+1}")
        A("s_nop 1")
        A(f"v_cndmask_b32 v{v_sel+q}, v{v_sel+q}, v{v_p0}, vcc")
        A(f"v_cmp_eq_u32 vcc, {2*q+1}, v{v_t+1}")
        A("s_nop 1")
        A(f"v_cndmask_b32 v{v_sel+q}, v{v_sel+q}, v{v_p1}, vcc")
    A(f"v_mov_b32 v{v_one}, 1.0")

    def scale_regs(base, n):
        for i in range(n):
            t = v_t + 2 * (i % 2)
            x = base + i
            A(f"v_lshlrev_b32 v{t}, 16, v{x}")
            A(f"v_and_b32 v{t+1}, 0xffff0000, v{x}")
            if pk:
                A(f"v_pk_mul_f32 {vr(t,2)}, {vr(t,2)}, s[{s_scale}:{s_scale+1}]")
            else:
                A(f"v_mul_f32 v{t}, s{s_scale}, v{t}")
                A(f"v_mul_f32 v{t+1}, s{s_scale}, v{t+1}")
            A(f"v_cvt_pk_bf16_f32 v{x}, v{t}, v{t+1}")
    def sumsq(base):
        A(f"v_dot2_f32_bf16 v{v_p0}, v{base}, v{base}, 0")
        A(f"v_dot2_f32_bf16 v{v_p1}, v{base+1}, v{base+1}, 0")
        for i in range(2, 16):
            p = v_p0 if i % 2 == 0 else v_p1
            A(f"v_dot2_f32_bf16 v{p}, v{base+i}, v{base+i}, v{p}")
        A("s_nop 2")
        A(f"v_add_f32 v{v_p0}, v{v_p0}, v{v_p1}")
    def proj(base):
        for t in range(4):
            for mt in range(4):
                c = "0" if t == 0 else vr(v_D + 4 * mt)
                A(f"v_mfma_f32_16x16x32_bf16 {vr(v_D+4*mt)}, {ar(a_om+16*mt+4*t)}, {vr(base+4*t)}, {c}")

    nloads_after = (depth - npre) * 8
    A(f"s_waitcnt vmcnt({min(63, nloads_after)})")
    if omlds:
        if not omred:
            if W > 4:
                A(f"s_cmp_ge_u32 s{s_wave}, 4")
                A("s_cbranch_scc1 L_b2")
            A("s_barrier")
            A("L_b2:")
        for t in range(4):
            A(f"v_add_u32 v{v_ksq+t}, {4*t}, v{v_t+2}")
            A(f"v_xor_b32 v{v_ksq+t}, v{v_ksq+t}, v{v_t+1}")
            A(f"v_lshlrev_b32 v{v_ksq+t}, 4, v{v_ksq+t}")
            A(f"v_lshl_add_u32 v{v_ksq+t}, v{v_t+1}, 8, v{v_ksq+t}")
        for mt in range(4):
            for t in range(4):
                A(f"ds_read_b128 {ar(a_om+16*mt+4*t)}, v{v_ksq+t} offset:{4096*mt}")
    scale_regs(qreg, 16)
    sumsq(qreg)
    A("s_nop 1")
    A(f"v_mfma_f32_16x16x4_f32 {vr(v_ksq)}, v{v_one}, v{v_p0}, 0")
    A(f"s_waitcnt lgkmcnt(0)")
    if stamp: A(f"s_memrealtime s[{s_ta}:{s_ta+1}]")
    proj(qreg)
    A("s_nop 7")
    A(f"v_cvt_pk_bf16_f32 v{v_nh}, 0, v{v_ksq}")
    A(f"v_mul_f32 v{v_nh}, -0.5, v{v_nh}")
    A(f"s_mov_b32 s{s_tmp}, {hex(f2u(LOG2E))}")
    A(f"s_mov_b32 s{s_tmp2}, {hex(f2u(1e-6))}")
    A(f"v_mov_b32 v{v_p1}, 0")
    for i in range(16):
        x = v_D + i
        A(f"v_cvt_pk_bf16_f32 v{x}, 0, v{x}")
        A(f"v_add_f32 v{x}, v{x}, v{v_nh}")
        A(f"v_cvt_pk_bf16_f32 v{x}, 0, v{x}")
        A(f"v_mul_f32 v{x}, s{s_tmp}, v{x}")
        A(f"v_exp_f32 v{x}, v{x}")
        A("s_nop 0")
        A(f"v_cvt_pk_bf16_f32 v{x}, 0, v{x}")
        A(f"v_mul_f32 v{x}, 0x3e000000, v{x}")
        A(f"v_add_f32 v{x}, s{s_tmp2}, v{x}")
        A(f"v_cvt_pk_bf16_f32 v{x}, 0, v{x}")
        A(f"v_add_f32 v{v_p1}, v{v_p1}, v{x}")
        A(f"v_mul_f32 v{x}, 0x3e000000, v{x}")
    for i in range(8):
        A(f"v_cvt_pk_bf16_f32 v{v_pq+i}, v{v_D+2*i}, v{v_D+2*i+1}")
    A(f"v_mul_f32 v{v_p1}, s{s_tmp2}, v{v_p1}")
    A("s_nop 1")
    A(f"v_mfma_f32_16x16x4_f32 {vr(v_c0)}, v{v_one}, v{v_p1}, 0")
    for r in range(4): A(f"v_mov_b32 v{v_acc+r}, 0")
    if not mimic:
        A(f"v_mov_b32 v{v_one}, {hex(f2u(-0.5*SCALE*SCALE*LOG2E))}")
    A("s_nop 7")
    A("s_nop 3")

    def tile(st, last):
        kb = v_K + 16 * st
        vb = a_V + 16 * st
        wk = min(63, ((depth - st) if last else depth) * 8 - 4)
        wv = min(63, (depth - st) * 8 - 8 if last else depth * 8 - 4)
        A(f"s_waitcnt vmcnt({wk})")
        if nocompute:
            if not last: issueK(st)
            A(f"s_waitcnt vmcnt({wv})")
            if not last: issueV(st)
            A(f"s_add_u32 s{s_off}, s{s_off}, {STEP}")
            return
        if mimic: scale_regs(kb, 16)
        sumsq(kb)
        A("s_nop 1")
        A(f"v_mfma_f32_16x16x4_f32 {vr(v_ksq)}, v{v_one}, v{v_p0}, 0")
        proj(kb)
        if last: A('s_nop 3')
        else: issueK(st)
        if mimic:
            A(f"v_cvt_pk_bf16_f32 v{v_nh}, 0, v{v_ksq}")
            A(f"v_mul_f32 v{v_nh}, -0.5, v{v_nh}")
            A("s_nop 1")
        else:
            A("s_nop 3")
        for mt in range(4):
            xs = [v_D + 4 * mt + r for r in range(4)]
            if mimic:
                for x in xs: A(f"v_cvt_pk_bf16_f32 v{x}, 0, v{x}")
                if pk:
                    for h in range(2): A(f"v_pk_add_f32 {vr(xs[2*h],2)}, {vr(xs[2*h],2)}, {vr(v_nh-0,2)} op_sel_hi:[1,0]")
                else:
                    for x in xs: A(f"v_add_f32 v{x}, v{x}, v{v_nh}")
                for x in xs: A(f"v_cvt_pk_bf16_f32 v{x}, 0, v{x}")
                if pk:
                    for h in range(2): A(f"v_pk_mul_f32 {vr(xs[2*h],2)}, {vr(xs[2*h],2)}, s[{s_c1}:{s_c1+1}]")
                else:
                    for x in xs: A(f"v_mul_f32 v{x}, s{s_c1}, v{x}")
            else:
                for x in xs: A(f"v_fma_f32 v{x}, v{x}, s{s_c1}, v{v_ksq}")
            for x in xs: A(f"v_exp_f32 v{x}, v{x}")
            A("s_nop 0")
            A(f"v_cvt_pk_bf16_f32 v{v_P+2*mt}, v{xs[0]}, v{xs[1]}")
            A(f"v_cvt_pk_bf16_f32 v{v_P+2*mt+1}, v{xs[2]}, v{xs[3]}")
        A("s_nop 1")
        A(f"v_mfma_f32_16x16x32_bf16 {vr(v_w)}, {vr(v_P)}, {vr(v_pq)}, {vr(v_c0)}")
        A(f"v_mfma_f32_16x16x32_bf16 {vr(v_w)}, {vr(v_P+4)}, {vr(v_pq+4)}, {vr(v_w)}")
        A("s_nop 7")
        for r in range(4): A(f"v_cvt_pk_bf16_f32 v{v_w+r}, 0, v{v_w+r}")
        for r in range(4):
            for q in range(4):
                A(f"v_perm_b32 v{v_A+4*r+q}, v{v_w+r}, v{v_w+r}, v{v_sel+q}")
        for r in range(4): A(f"v_add_f32 v{v_den}, v{v_den}, v{v_w+r}")
        A(f"s_waitcnt vmcnt({wv})")
        for r in range(4):
            A(f"v_mfma_f32_16x16x32_bf16 {vr(v_acc)}, {vr(v_A+4*r)}, {ar(vb+4*r)}, {vr(v_acc)}")
        if not last:
            issueV(st)
            A(f"s_add_u32 s{s_off}, s{s_off}, {STEP}")
    A(f"s_mov_b32 s{s_cnt}, {TILES_WAVE // depth - (1 if peel else 0)}")
    if stamp: A(f"s_memrealtime s[{s_tb}:{s_tb+1}]\ns_mov_b32 s{s_tc}, 0")
    A(".p2align 6")
    A("L_loop:")
    for st in range(depth): tile(st, False)
    if stamp:
        A(f"s_cmp_lg_u32 s{s_tc}, 0\ns_cbranch_scc1 L_st1\ns_memrealtime s[{s_tc}:{s_tc+1}]\ns_waitcnt lgkmcnt(0)\nL_st1:")
    A(f"s_sub_u32 s{s_cnt}, s{s_cnt}, 1")
    A(f"s_cmp_lg_u32 s{s_cnt}, 0")
    A("s_cbranch_scc1 L_loop")

    if peel:
        for st in range(depth): tile(st, True)
        A('s_nop 4')

    A(f"v_mov_b32 v{v_one}, 1.0")
    A("s_nop 1")
    A(f"v_mfma_f32_16x16x4_f32 {vr(v_ksq)}, v{v_one}, v{v_den}, 0")
    A(f"v_and_b32 v{v_t+1}, 15, v{v_lane}")
    A(f"v_lshrrev_b32 v{v_t+2}, 4, v{v_lane}")
    A(f"v_lshlrev_b32 v{v_t}, 5, v{v_t+1}")
    A(f"v_lshl_add_u32 v{v_t}, v{v_t+2}, 4, v{v_t}")
    A(f"s_lshl_b32 s{s_tmp}, s{s_wave}, 9")
    A(f"s_add_u32 s{s_tmp}, s{s_tmp}, {RED}")
    A(f"v_add_u32 v{v_t}, s{s_tmp}, v{v_t}")
    A(f"s_lshl_b32 s{s_tmp}, s{s_wave}, 2")
    A(f"s_add_u32 s{s_tmp}, s{s_tmp}, {RED+W*512}")
    A(f"v_mov_b32 v{v_t+3}, s{s_tmp}")
    A("s_nop 4")
    A(f"s_mov_b32 exec_hi, 0")
    A(f"ds_write_b128 v{v_t}, {vr(v_acc)}")
    A(f"s_mov_b64 exec, 1")
    A(f"ds_write_b32 v{v_t+3}, v{v_ksq}")
    A(f"s_mov_b64 exec, -1")
    A("s_waitcnt vmcnt(0) lgkmcnt(0)")
    if stamp:
        A(f"s_memrealtime s[{s_t1}:{s_t1+1}]")
        A("s_waitcnt lgkmcnt(0)")
        A(f"s_mul_i32 s{s_tmp}, s2, {W}\ns_add_u32 s{s_tmp}, s{s_tmp}, s{s_wave}\ns_lshl_b32 s{s_tmp}, s{s_tmp}, 5")
        A(f"s_add_u32 s{s_tmp}, s{s_tmp}, {0x100000 + sbase}")
        A(f"s_getreg_b32 s{s_tmp2}, hwreg(HW_REG_XCC_ID)")
        A(f"v_mov_b32 v{v_D}, s{s_t0}\nv_mov_b32 v{v_D+1}, s{s_t1}\nv_mov_b32 v{v_D+2}, s{s_tmp2}\nv_mov_b32 v{v_D+3}, s{s_ta}\nv_mov_b32 v{v_D+4}, s{s_tb}\nv_mov_b32 v{v_D+5}, s{s_tc}\nv_mov_b32 v{v_D+8}, s{s_tmp}")
        A(f"s_mov_b64 exec, 1")
        A(f"global_store_dwordx4 v{v_D+8}, {vr(v_D)}, s[{s_ws}:{s_ws+1}]")
        A(f"global_store_dwordx4 v{v_D+8}, {vr(v_D+4)}, s[{s_ws}:{s_ws+1}] offset:16")
        A(f"s_mov_b64 exec, -1")
    A("s_barrier")
    A(f"s_cmp_lg_u32 s{s_wave}, 0")
    A("s_cbranch_scc1 L_done")
    A(f"v_lshlrev_b32 v{v_t}, 3, v{v_lane}")
    for w in range(W):
        A(f"ds_read_b64 {vr(v_D+2*w,2)}, v{v_t} offset:{RED+512*w}")
    A(f"v_mov_b32 v{v_t+1}, {RED+W*512}")
    for h in range(W // 4):
        A(f"ds_read_b128 {vr(v_K+4*h)}, v{v_t+1} offset:{16*h}")
    A("s_waitcnt lgkmcnt(0)")
    for w in range(1, W):
        A(f"v_add_f32 v{v_D}, v{v_D}, v{v_D+2*w}")
        A(f"v_add_f32 v{v_D+1}, v{v_D+1}, v{v_D+2*w+1}")
        A(f"v_add_f32 v{v_K}, v{v_K}, v{v_K+w}")
    A(f"s_lshl_b32 s{s_tmp}, s2, 10")
    A(f"v_add_u32 v{v_t+1}, s{s_tmp}, v{v_t}")
    A(f"global_store_dwordx2 v{v_t+1}, {vr(v_D,2)}, s[{s_ws}:{s_ws+1}] sc0 sc1")
    A(f"v_mov_b32 v{v_t+2}, s{s_tmp}")
    A(f"s_mov_b64 exec, 1")
    A(f"global_store_dword v{v_t+2}, v{v_K}, s[{s_ws}:{s_ws+1}] offset:512 sc0 sc1")
    A(f"s_and_b32 s{s_tmp2}, s{s_head}, 0x7c")
    A(f"s_add_u32 s{s_tmp2}, s{s_tmp2}, 128")
    A(f"v_mov_b32 v{v_t+3}, s{s_tmp2}")
    A(f"s_and_b32 s{s_tmp2}, s{s_head}, 3")
    A(f"s_lshl_b32 s{s_tmp2}, s{s_tmp2}, 3")
    A(f"s_lshl_b32 s{s_cnt}, 1, s{s_tmp2}")
    A(f"v_mov_b32 v{v_p0}, s{s_cnt}")
    A("s_waitcnt vmcnt(0)")
    A(f"global_atomic_add v{v_p1}, v{v_t+3}, v{v_p0}, s[{s_dbg}:{s_dbg+1}] sc0")
    A("s_waitcnt vmcnt(0)")
    A(f"v_readfirstlane_b32 s{s_cnt}, v{v_p1}")
    A(f"s_mov_b64 exec, -1")
    A(f"s_lshr_b32 s{s_cnt}, s{s_cnt}, s{s_tmp2}")
    A(f"s_and_b32 s{s_cnt}, s{s_cnt}, 0xff")
    A(f"s_cmp_eq_u32 s{s_cnt}, 0")
    A("s_cbranch_scc1 L_fin" )
    A(f"v_xor_b32 v{v_t+1}, 1024, v{v_t+1}")
    A(f"v_xor_b32 v{v_t+2}, 1024, v{v_t+2}")
    A(f"global_load_dwordx2 {vr(v_D+2,2)}, v{v_t+1}, s[{s_ws}:{s_ws+1}] sc0 sc1")
    A(f"global_load_dword v{v_K+1}, v{v_t+2}, s[{s_ws}:{s_ws+1}] offset:512 sc0 sc1")
    A(f"s_lshl_b32 s{s_tmp}, s{s_head}, 8")
    A(f"v_lshlrev_b32 v{v_t}, 2, v{v_lane}")
    A(f"v_add_u32 v{v_t}, s{s_tmp}, v{v_t}")
    A("s_waitcnt vmcnt(0)")
    A(f"v_add_f32 v{v_D}, v{v_D}, v{v_D+2}")
    A(f"v_add_f32 v{v_D+1}, v{v_D+1}, v{v_D+3}")
    A(f"v_add_f32 v{v_K}, v{v_K}, v{v_K+1}")
    A(f"v_add_f32 v{v_K}, {hex(f2u(1e-6))}, v{v_K}")
    den = v_K
    for i in range(2):
        n = v_D + i
        a, b, c, d_, e = v_P, v_P+1, v_P+2, v_P+3, v_P+4
        A(f"v_div_scale_f32 v{a}, s[{s_t0}:{s_t0+1}], v{den}, v{den}, v{n}")
        A(f"v_rcp_f32 v{b}, v{a}")
        A(f"v_div_scale_f32 v{c}, vcc, v{n}, v{den}, v{n}")
        A(f"v_fma_f32 v{d_}, -v{a}, v{b}, 1.0")
        A(f"v_fma_f32 v{b}, v{d_}, v{b}, v{b}")
        A(f"v_mul_f32 v{d_}, v{c}, v{b}")
        A(f"v_fma_f32 v{e}, -v{a}, v{d_}, v{c}")
        A(f"v_fma_f32 v{d_}, v{e}, v{b}, v{d_}")
        A(f"v_fma_f32 v{a}, -v{a}, v{d_}, v{c}")
        A("s_nop 1")
        A(f"v_div_fmas_f32 v{a}, v{a}, v{b}, v{d_}")
        A(f"v_div_fixup_f32 v{n}, v{a}, v{den}, v{n}")
    A(f"v_cvt_pk_bf16_f32 v{v_D}, v{v_D}, v{v_D+1}")
    A(f"global_store_dword v{v_t}, v{v_D}, s[{s_out}:{s_out+1}]")
    A("L_fin:")
    if dbgstamp:
        A("s_waitcnt vmcnt(0)")
        A(f"s_memrealtime s[{s_t1}:{s_t1+1}]")
        A("s_waitcnt lgkmcnt(0)")
        A(f"s_not_b32 s{s_tmp}, s{s_tb}")
        A(f"v_mov_b32 v{v_D+1}, s{s_t1}\nv_mov_b32 v{v_D+4}, 0\nv_mov_b32 v{v_D}, s{s_tmp}")
        A(f"s_mov_b64 exec, 1")
        A(f"global_atomic_umax v{v_D+4}, v{v_D+1}, s[{s_dbg}:{s_dbg+1}] offset:8")
        A(f"global_atomic_umax v{v_D+4}, v{v_D}, s[{s_dbg}:{s_dbg+1}]")
    if stamp:
        A("s_waitcnt vmcnt(0)")
        A(f"s_memrealtime s[{s_t1}:{s_t1+1}]")
        A("s_waitcnt lgkmcnt(0)")
        A(f"s_lshl_b32 s{s_tmp}, s2, 4")
        A(f"s_add_u32 s{s_tmp}, s{s_tmp}, {0x180000 + sbase}")
        A(f"v_mov_b32 v{v_D}, s{s_cnt}\nv_mov_b32 v{v_D+1}, s{s_t1}\nv_mov_b32 v{v_D+4}, s{s_tmp}")
        A(f"s_mov_b64 exec, 1")
        A(f"global_store_dwordx2 v{v_D+4}, {vr(v_D,2)}, s[{s_ws}:{s_ws+1}]")
    A("L_done:")
    A("s_endpgm")

    out = HEADER + f"; @launch grid=({NWG},1,1) block=({W*64},1,1) lds={lds}\n"
    out += f'.amdgcn_target "amdgcn-amd-amdhsa--gfx950"\n.text\n.globl {name}\n.p2align 8\n.type {name},@function\n{name}:\n'
    out += A.text()
    out += f""".section .rodata,"a"
.p2align 6
.amdhsa_kernel {name}
  .amdhsa_next_free_vgpr {total}
  .amdhsa_next_free_sgpr 56
  .amdhsa_accum_offset {acc_off}
  .amdhsa_group_segment_fixed_size 0
  .amdhsa_kernarg_size 56
  .amdhsa_user_sgpr_count 2
  .amdhsa_user_sgpr_kernarg_segment_ptr 1
  .amdhsa_system_sgpr_workgroup_id_x 1
  .amdhsa_float_denorm_mode_32 3
.end_amdhsa_kernel
"""
    if meta: out += META.format(name=name, vgpr=total, wg=W*64)
    return out, f"{NWG}:{W*64}:{lds}", total

if __name__ == "__main__":
    if sys.argv[1] == "final":
        kw = eval("dict(" + (sys.argv[3] if len(sys.argv) > 3 else "") + ")")
        t, g, tot = gen(**kw)
        open(sys.argv[2], "w").write(t)
        print(g, "regs", tot)
    else:
        cfgs = eval(open(sys.argv[1]).read())
        specs = []
        for c in cfgs:
            t, g, tot = gen(meta=True, **c)
            n = c["name"]
            open(n + ".s", "w").write(t)
            subprocess.check_call(["clang", "-x", "assembler", "-target", "amdgcn-amd-amdhsa", "-mcpu=gfx950", n + ".s", "-o", n + ".co"])
            specs.append(f"{n}.co:{n}:{g}")
            print(n, "regs", tot, file=sys.stderr)
        open("specs.txt", "w").write(" ".join(specs))
```

```python
import struct, sys, subprocess
from gen import HEADER, META, G, vr, ar, f2u, SCALE, LOG2E

def gen(name="standalone__linear_kernel_rfa__decode_kernel", W=8, mimic=True, pk=False,
        flags="nt", stamp=False, meta=False, sbase=0, ypre=1, vlag=True, early=True, pm=3,
        pollwin=10, nocompute=False, tagged=True, nap=1):
    NWG = 256
    ROWS_WG = 4096
    N = ROWS_WG // 16 // W
    A = G()
    sK, sV, sO, sQ = 8, 12, 16, 20
    s_wave, s_head, s_ko, s_cnt = 3, 24, 25, 26
    s_vo = 27
    s_out, s_dbg, s_ws = 28, 30, 32
    s_scale, s_c1, s_tmp, s_tmp2 = 34, 36, 38, 39
    s_t0, s_t1, s_ta, s_tb, s_tc = 40, 42, 44, 46, 48
    s_sh, s_have, s_pok = 50, 51, 52
    v_lane = 0
    v_ko, v_vo = 1, 2
    v_one, v_nh, v_den, v_p0, v_p1 = 3, 4, 5, 6, 7
    v_sel = 8
    v_pq = 12
    v_c0 = 20
    v_acc = 24
    v_ksq = 28
    v_w = [32, 36]
    v_P = 40
    v_D = 48
    v_A = 64
    v_t = 80
    v_prog = 84
    v_K = 88
    nv = v_K + 32
    acc_off = (nv + 3) // 4 * 4
    a_om = 0
    a_V = 64
    na = a_V + 32
    total = acc_off + na
    RED = 16384
    CTR = RED + W * 512 + 32
    lds = CTR + 32
    STEP = W * 4096

    A(f"s_cmp_ge_u32 s2, {NWG}")
    A("s_cbranch_scc1 L_done")
    A("s_load_dwordx8 s[4:11], s[0:1], 0")
    A(f"s_load_dwordx4 s[{s_out}:{s_out+3}], s[0:1], 32")
    A(f"s_load_dwordx2 s[{s_ws}:{s_ws+1}], s[0:1], 48")
    if stamp: A(f"s_memrealtime s[{s_t0}:{s_t0+1}]")
    A(f"v_lshrrev_b32 v{v_t}, 6, v0")
    A(f"v_and_b32 v{v_lane}, 63, v0")
    A(f"v_readfirstlane_b32 s{s_wave}, v{v_t}")
    A(f"v_and_b32 v{v_t+1}, 15, v{v_lane}")
    A(f"v_lshrrev_b32 v{v_t+2}, 4, v{v_lane}")
    A(f"v_lshlrev_b32 v{v_ko}, 8, v{v_t+1}")
    A(f"v_lshl_add_u32 v{v_ko}, v{v_t+2}, 4, v{v_ko}")
    A(f"v_lshlrev_b32 v{v_vo}, 10, v{v_t+2}")
    A(f"v_lshl_add_u32 v{v_vo}, v{v_t+1}, 4, v{v_vo}")
    A(f"v_lshlrev_b32 v{v_t+3}, 4, v{v_t+2}")
    if pm == 3:
        A(f"s_lshr_b32 s{s_tmp}, s2, 1")
        A(f"s_and_b32 s{s_tmp2}, s{s_tmp}, 1")
        A(f"s_xor_b32 s{s_tmp}, s{s_tmp}, s2")
        A(f"s_and_b32 s{s_tmp}, s{s_tmp}, 1")
        A(f"s_lshl_b32 s{s_tmp}, s{s_tmp}, 1")
        A(f"s_andn2_b32 s2, s2, 3")
        A(f"s_or_b32 s2, s2, s{s_tmp}")
        A(f"s_or_b32 s2, s2, s{s_tmp2}")
    A(f"s_lshr_b32 s{s_head}, s2, 1")
    A(f"s_lshl_b32 s{s_ko}, s{s_wave}, 12")
    A(f"s_mov_b32 s{s_vo}, s{s_ko}")
    A(f"s_lshl_b32 s{s_tmp2}, s2, 20")
    for i in range(4):
        A(f"v_add_u32 v{v_ksq+i}, {4*i}, v{v_t+2}")
        A(f"v_xor_b32 v{v_ksq+i}, v{v_ksq+i}, v{v_t+1}")
        A(f"v_lshlrev_b32 v{v_ksq+i}, 4, v{v_ksq+i}")
        A(f"v_lshl_add_u32 v{v_ksq+i}, v{v_t+2}, 8, v{v_ksq+i}")
    A("s_waitcnt lgkmcnt(0)")
    A(f"""s_add_u32 s{sV}, s8, s{s_tmp2}
    s_addc_u32 s{sV+1}, s9, 0
    s_and_b32 s{sV+1}, s{sV+1}, 0xffff
    s_mov_b32 s{sV+2}, {ROWS_WG*256}
    s_mov_b32 s{sV+3}, 0x20000
    s_mov_b32 s{sO}, s10
    s_and_b32 s{sO+1}, s11, 0xffff
    s_mov_b32 s{sO+2}, 16384
    s_mov_b32 s{sO+3}, 0x20000
    s_add_u32 s{sK}, s6, s{s_tmp2}
    s_addc_u32 s{sK+1}, s7, 0
    s_and_b32 s{sK+1}, s{sK+1}, 0xffff
    s_mov_b32 s{sK+2}, {ROWS_WG*256}
    s_mov_b32 s{sK+3}, 0x20000
    s_mov_b32 s{sQ}, s4
    s_and_b32 s{sQ+1}, s5, 0xffff
    s_mov_b32 s{sQ+2}, 32768
    s_mov_b32 s{sQ+3}, 0x20000""")

    def issueK(st):
        for t in range(4):
            A(f"buffer_load_dwordx4 {vr(v_K+16*st+4*t)}, v{v_ko}, s[{sK}:{sK+3}], s{s_ko} offen offset:{64*t} {flags}")
        A(f"s_add_u32 s{s_ko}, s{s_ko}, {STEP}")
    def issueV(st):
        for r in range(4):
            A(f"buffer_load_dwordx4 {ar(a_V+16*st+4*r)}, v{v_vo}, s[{sV}:{sV+3}], s{s_vo} offen offset:{256*r} {flags}")
        A(f"s_add_u32 s{s_vo}, s{s_vo}, {STEP}")
    qreg = v_pq
    if tagged:
        A(f"s_cmp_lg_u32 s{s_wave}, {W-1}")
        A("s_cbranch_scc1 L_norst")
        for i in range(4): A(f"v_mov_b32 v{v_A+i}, 0")
        A(f"s_lshl_b32 s{s_tmp}, s2, 10")
        A(f"v_lshl_add_u32 v{v_A+4}, v{v_lane}, 4, s{s_tmp}")
        A(f"global_store_dwordx4 v{v_A+4}, {vr(v_A)}, s[{s_ws}:{s_ws+1}] sc0 sc1")
        A("L_norst:")
    if W > 4:
        A(f"s_cmp_ge_u32 s{s_wave}, 4")
        A("s_cbranch_scc1 L_noom")
    A(f"s_lshl_b32 s{s_tmp2}, s{s_wave}, 12")
    A(f"s_mov_b32 m0, s{s_tmp2}")
    A("s_nop 0")
    for i in range(4):
        A(f"buffer_load_dwordx4 v{v_ksq+i}, s[{sO}:{sO+3}], s{s_tmp2} offen offset:{1024*i} lds")
    A("L_noom:")
    A(f"s_lshl_b32 s{s_tmp}, s{s_head}, 8")
    for t in range(4):
        A(f"buffer_load_dwordx4 {vr(qreg+4*t)}, v{v_t+3}, s[{sQ}:{sQ+3}], s{s_tmp} offen offset:{64*t}")
    pro = [("K", 0), ("K", 1), ("V", 0)] if vlag else [("K", 0), ("V", 0), ("K", 1), ("V", 1)]
    for idx, (kind, st) in enumerate(pro):
        if idx == ypre and W > 4:
            A(f"s_cmp_lt_u32 s{s_wave}, 4")
            A("s_cbranch_scc1 L_b1")
            A("s_barrier")
            A("L_b1:")
        (issueK if kind == "K" else issueV)(st)
    if ypre >= len(pro) and W > 4:
        A(f"s_cmp_lt_u32 s{s_wave}, 4")
        A("s_cbranch_scc1 L_b1")
        A("s_barrier")
        A("L_b1:")
    npro = 4 * len(pro)
    A(f"s_mov_b32 s{s_scale}, {hex(f2u(SCALE))}")
    A(f"s_mov_b32 s{s_scale+1}, {hex(f2u(SCALE))}")
    c1 = LOG2E if mimic else SCALE * LOG2E
    A(f"s_mov_b32 s{s_c1}, {hex(f2u(c1))}")
    A(f"s_mov_b32 s{s_c1+1}, {hex(f2u(c1))}")
    A(f"v_mov_b32 v{v_den}, 0")
    A(f"v_mov_b32 v{v_p0}, 0x0c0c0302")
    A(f"v_mov_b32 v{v_p1}, 0x03020c0c")
    for q in range(4):
        A(f"v_mov_b32 v{v_sel+q}, 0x0c0c0c0c")
        A(f"v_cmp_eq_u32 vcc, {2*q}, v{v_t+1}")
        A("s_nop 1")
        A(f"v_cndmask_b32 v{v_sel+q}, v{v_sel+q}, v{v_p0}, vcc")
        A(f"v_cmp_eq_u32 vcc, {2*q+1}, v{v_t+1}")
        A("s_nop 1")
        A(f"v_cndmask_b32 v{v_sel+q}, v{v_sel+q}, v{v_p1}, vcc")
    A(f"v_mov_b32 v{v_one}, 1.0")
    A(f"v_mov_b32 v{v_prog}, {CTR}")
    A(f"v_mov_b32 v{v_prog+1}, 1")
    for t in range(4):
        A(f"v_add_u32 v{v_D+t}, {4*t}, v{v_t+2}")
        A(f"v_xor_b32 v{v_D+t}, v{v_D+t}, v{v_t+1}")
        A(f"v_lshlrev_b32 v{v_D+t}, 4, v{v_D+t}")
        A(f"v_lshl_add_u32 v{v_D+t}, v{v_t+1}, 8, v{v_D+t}")

    def scale_regs(base, n):
        for i in range(n):
            t = v_t + 2 * (i % 2)
            x = base + i
            A(f"v_lshlrev_b32 v{t}, 16, v{x}")
            A(f"v_and_b32 v{t+1}, 0xffff0000, v{x}")
            if pk:
                A(f"v_pk_mul_f32 {vr(t,2)}, {vr(t,2)}, s[{s_scale}:{s_scale+1}]")
            else:
                A(f"v_mul_f32 v{t}, s{s_scale}, v{t}")
                A(f"v_mul_f32 v{t+1}, s{s_scale}, v{t+1}")
            A(f"v_cvt_pk_bf16_f32 v{x}, v{t}, v{t+1}")
    def sumsq(base):
        A(f"v_dot2_f32_bf16 v{v_p0}, v{base}, v{base}, 0")
        A(f"v_dot2_f32_bf16 v{v_p1}, v{base+1}, v{base+1}, 0")
        for i in range(2, 16):
            p = v_p0 if i % 2 == 0 else v_p1
            A(f"v_dot2_f32_bf16 v{p}, v{base+i}, v{base+i}, v{p}")
        A("s_nop 2")
        A(f"v_add_f32 v{v_p0}, v{v_p0}, v{v_p1}")
    def proj(base):
        for t in range(4):
            for mt in range(4):
                c = "0" if t == 0 else vr(v_D + 4 * mt)
                A(f"v_mfma_f32_16x16x32_bf16 {vr(v_D+4*mt)}, {ar(a_om+16*mt+4*t)}, {vr(base+4*t)}, {c}")

    if early:
        A(f"s_cmp_lg_u32 s{s_wave}, 0")
        A("s_cbranch_scc1 L_nz")
        A(f"v_mov_b32 v{v_P}, 0")
        A(f"v_mov_b32 v{v_P+1}, 0")
        A(f"ds_write_b64 v{v_prog}, {vr(v_P,2)}")
        A("L_nz:")
    A(f"s_waitcnt vmcnt({npro}) lgkmcnt(0)")
    if W > 4:
        A(f"s_cmp_ge_u32 s{s_wave}, 4")
        A("s_cbranch_scc1 L_b2")
    A("s_barrier")
    A("L_b2:")
    if tagged:
        A(f"s_cmp_lg_u32 s{s_wave}, {W-1}")
        A("s_cbranch_scc1 L_noann")
        A(f"s_and_b32 s{s_tmp}, s2, 31")
        A(f"s_lshl_b32 s{s_tmp}, 1, s{s_tmp}")
        A(f"s_lshr_b32 s{s_tmp2}, s2, 5")
        A(f"s_lshl_b32 s{s_tmp2}, s{s_tmp2}, 5")
        A(f"v_mov_b32 v{v_A}, s{s_tmp}")
        A(f"v_mov_b32 v{v_A+1}, s{s_tmp2}")
        A("s_mov_b64 exec, 1")
        A(f"global_atomic_or v{v_A+1}, v{v_A}, s[{s_dbg}:{s_dbg+1}]")
        A("s_mov_b64 exec, -1")
        A("L_noann:")
    for mt in range(4):
        for t in range(4):
            A(f"ds_read_b128 {ar(a_om+16*mt+4*t)}, v{v_D+t} offset:{4096*mt}")
    scale_regs(qreg, 16)
    sumsq(qreg)
    A("s_nop 1")
    A(f"v_mfma_f32_16x16x4_f32 {vr(v_ksq)}, v{v_one}, v{v_p0}, 0")
    A(f"s_waitcnt lgkmcnt(0)")
    if stamp: A(f"s_memrealtime s[{s_ta}:{s_ta+1}]")
    proj(qreg)
    A("s_nop 7")
    A(f"v_cvt_pk_bf16_f32 v{v_nh}, 0, v{v_ksq}")
    A(f"v_mul_f32 v{v_nh}, -0.5, v{v_nh}")
    A(f"s_mov_b32 s{s_tmp}, {hex(f2u(LOG2E))}")
    A(f"s_mov_b32 s{s_tmp2}, {hex(f2u(1e-6))}")
    A(f"v_mov_b32 v{v_p1}, 0")
    for mt in range(4):
        xs = [v_D + 4 * mt + r for r in range(4)]
        for x in xs: A(f"v_cvt_pk_bf16_f32 v{x}, 0, v{x}")
        for x in xs: A(f"v_add_f32 v{x}, v{x}, v{v_nh}")
        for x in xs: A(f"v_cvt_pk_bf16_f32 v{x}, 0, v{x}")
        for x in xs: A(f"v_mul_f32 v{x}, s{s_tmp}, v{x}")
        for x in xs: A(f"v_exp_f32 v{x}, v{x}")
        A("s_nop 0")
        for x in xs: A(f"v_cvt_pk_bf16_f32 v{x}, 0, v{x}")
        for x in xs: A(f"v_mul_f32 v{x}, 0x3e000000, v{x}")
        for x in xs: A(f"v_add_f32 v{x}, s{s_tmp2}, v{x}")
        for x in xs: A(f"v_cvt_pk_bf16_f32 v{x}, 0, v{x}")
        for x in xs: A(f"v_add_f32 v{v_p1}, v{v_p1}, v{x}")
        for x in xs: A(f"v_mul_f32 v{x}, 0x3e000000, v{x}")
    for i in range(8):
        A(f"v_cvt_pk_bf16_f32 v{v_pq+i}, v{v_D+2*i}, v{v_D+2*i+1}")
    A(f"v_mul_f32 v{v_p1}, s{s_tmp2}, v{v_p1}")
    A("s_nop 1")
    A(f"v_mfma_f32_16x16x4_f32 {vr(v_c0)}, v{v_one}, v{v_p1}, 0")
    for r in range(4): A(f"v_mov_b32 v{v_acc+r}, 0")
    if not mimic:
        A(f"v_mov_b32 v{v_one}, {hex(f2u(-0.5*SCALE*SCALE*LOG2E))}")
    if stamp: A(f"s_memrealtime s[{s_tb}:{s_tb+1}]\ns_mov_b32 s{s_tc}, 0")

    def kphase(st, wait, issue, wb):
        kb = v_K + 16 * st
        A(f"s_waitcnt vmcnt({wait})")
        if nocompute:
            if issue: issueK(st)
            return
        if mimic: scale_regs(kb, 16)
        sumsq(kb)
        A("s_nop 1")
        A(f"v_mfma_f32_16x16x4_f32 {vr(v_ksq)}, v{v_one}, v{v_p0}, 0")
        proj(kb)
        if issue: issueK(st)
        else: A("s_nop 4")
        if mimic:
            A(f"v_cvt_pk_bf16_f32 v{v_nh}, 0, v{v_ksq}")
            A(f"v_mul_f32 v{v_nh}, -0.5, v{v_nh}")
            A("s_nop 0")
        else:
            A("s_nop 2")
        for mt in range(4):
            xs = [v_D + 4 * mt + r for r in range(4)]
            if mimic:
                for x in xs: A(f"v_cvt_pk_bf16_f32 v{x}, 0, v{x}")
                if pk:
                    for h in range(2): A(f"v_pk_add_f32 {vr(xs[2*h],2)}, {vr(xs[2*h],2)}, {vr(v_nh,2)} op_sel_hi:[1,0]")
                else:
                    for x in xs: A(f"v_add_f32 v{x}, v{x}, v{v_nh}")
                for x in xs: A(f"v_cvt_pk_bf16_f32 v{x}, 0, v{x}")
                if pk:
                    for h in range(2): A(f"v_pk_mul_f32 {vr(xs[2*h],2)}, {vr(xs[2*h],2)}, s[{s_c1}:{s_c1+1}]")
                else:
                    for x in xs: A(f"v_mul_f32 v{x}, s{s_c1}, v{x}")
            else:
                for x in xs: A(f"v_fma_f32 v{x}, v{x}, s{s_c1}, v{v_ksq}")
            for x in xs: A(f"v_exp_f32 v{x}, v{x}")
            A("s_nop 0")
            A(f"v_cvt_pk_bf16_f32 v{v_P+2*mt}, v{xs[0]}, v{xs[1]}")
            A(f"v_cvt_pk_bf16_f32 v{v_P+2*mt+1}, v{xs[2]}, v{xs[3]}")
        A("s_nop 1")
        w = v_w[wb]
        A(f"v_mfma_f32_16x16x32_bf16 {vr(w)}, {vr(v_P)}, {vr(v_pq)}, {vr(v_c0)}")
        A(f"v_mfma_f32_16x16x32_bf16 {vr(w)}, {vr(v_P+4)}, {vr(v_pq+4)}, {vr(w)}")
    def vphase(st, wait, issue, wb, pad):
        vb = a_V + 16 * st
        w = v_w[wb]
        if not nocompute:
            if pad: A("s_nop 7")
            for r in range(4): A(f"v_cvt_pk_bf16_f32 v{w+r}, 0, v{w+r}")
            for r in range(4):
                for q in range(4):
                    A(f"v_perm_b32 v{v_A+4*r+q}, v{w+r}, v{w+r}, v{v_sel+q}")
            for r in range(4): A(f"v_add_f32 v{v_den}, v{v_den}, v{w+r}")
        A(f"s_waitcnt vmcnt({wait})")
        if not nocompute:
            for r in range(4):
                A(f"v_mfma_f32_16x16x32_bf16 {vr(v_acc)}, {vr(v_A+4*r)}, {ar(vb+4*r)}, {vr(v_acc)}")
        if issue: issueV(st)
    def loop_tail():
        if early: A(f"ds_add_u32 v{v_prog}, v{v_prog+1}")
        if stamp:
            A(f"s_cmp_lg_u32 s{s_tc}, 0\ns_cbranch_scc1 L_st1\ns_memrealtime s[{s_tc}:{s_tc+1}]\ns_waitcnt lgkmcnt(0)\nL_st1:")
        A(f"s_sub_u32 s{s_cnt}, s{s_cnt}, 1")
        A(f"s_cmp_lg_u32 s{s_cnt}, 0")
        A("s_cbranch_scc1 L_loop")

    if vlag:
        A("s_nop 3")
        kphase(0, 8, True, 0)
        issueV(1)
        trips = (N - 2) // 2
        A(f"s_mov_b32 s{s_cnt}, {trips}")
        A(".p2align 6")
        A("L_loop:")
        kphase(1, 12, True, 1); vphase(0, 12, True, 0, False)
        kphase(0, 12, True, 0); vphase(1, 12, True, 1, False)
        loop_tail()
        kphase(1, 12, False, 1)
        vphase(0, 8, False, 0, False)
        vphase(1, 0, False, 1, True)
        ntrip_total = trips
    else:
        A("s_nop 7")
        A(f"s_mov_b32 s{s_cnt}, {N // 2}")
        A(".p2align 6")
        A("L_loop:")
        for st in range(2):
            kphase(st, 12, True, 0); vphase(st, 12, True, 0, True)
        loop_tail()
        ntrip_total = N // 2

    A(f"v_mov_b32 v{v_one}, 1.0")
    A(f"v_and_b32 v{v_t+1}, 15, v{v_lane}")
    A(f"v_lshrrev_b32 v{v_t+2}, 4, v{v_lane}")
    A(f"v_mfma_f32_16x16x4_f32 {vr(v_ksq)}, v{v_one}, v{v_den}, 0")
    A(f"v_lshlrev_b32 v{v_t}, 5, v{v_t+1}")
    A(f"v_lshl_add_u32 v{v_t}, v{v_t+2}, 4, v{v_t}")
    A(f"s_lshl_b32 s{s_tmp}, s{s_wave}, 9")
    A(f"s_add_u32 s{s_tmp}, s{s_tmp}, {RED}")
    A(f"v_add_u32 v{v_t}, s{s_tmp}, v{v_t}")
    A(f"s_lshl_b32 s{s_tmp}, s{s_wave}, 2")
    A(f"s_add_u32 s{s_tmp}, s{s_tmp}, {RED+W*512}")
    A(f"v_mov_b32 v{v_t+3}, s{s_tmp}")
    A(f"s_mov_b32 exec_hi, 0")
    A(f"ds_write_b128 v{v_t}, {vr(v_acc)}")
    A(f"s_mov_b64 exec, 1")
    A(f"ds_write_b32 v{v_t+3}, v{v_ksq}")
    if stamp:
        A("s_waitcnt vmcnt(0) lgkmcnt(0)")
        A(f"s_memrealtime s[{s_t1}:{s_t1+1}]")
        A("s_waitcnt lgkmcnt(0)")
        A(f"s_mul_i32 s{s_tmp}, s2, {W}\ns_add_u32 s{s_tmp}, s{s_tmp}, s{s_wave}\ns_lshl_b32 s{s_tmp}, s{s_tmp}, 5")
        A(f"s_add_u32 s{s_tmp}, s{s_tmp}, {0x100000 + sbase}")
        A(f"s_getreg_b32 s{s_tmp2}, hwreg(HW_REG_XCC_ID)")
        A(f"v_mov_b32 v{v_D}, s{s_t0}\nv_mov_b32 v{v_D+1}, s{s_t1}\nv_mov_b32 v{v_D+2}, s{s_tmp2}\nv_mov_b32 v{v_D+3}, s{s_ta}\nv_mov_b32 v{v_D+4}, s{s_tb}\nv_mov_b32 v{v_D+5}, s{s_tc}\nv_mov_b32 v{v_D+8}, s{s_tmp}")
        A(f"global_store_dwordx4 v{v_D+8}, {vr(v_D)}, s[{s_ws}:{s_ws+1}]")
        A(f"global_store_dwordx4 v{v_D+8}, {vr(v_D+4)}, s[{s_ws}:{s_ws+1}] offset:16")
    if early:
        A(f"ds_add_u32 v{v_prog}, v{v_prog+1} offset:4")
        A(f"s_mov_b64 exec, -1")
    else:
        A(f"s_mov_b64 exec, -1")
        A("s_waitcnt lgkmcnt(0)")
        A("s_barrier")
    A(f"s_cmp_lg_u32 s{s_wave}, 0")
    A("s_cbranch_scc1 L_done")
    n0, n1, dn = v_D, v_D + 1, v_D + 2
    pn, pd = v_A, v_A + 2
    if tagged:
        A(f"v_lshlrev_b32 v{v_t}, 3, v{v_lane}")
        A(f"s_lshl_b32 s{s_tmp}, s2, 10")
        A(f"v_lshl_add_u32 v{v_t+1}, v{v_lane}, 4, s{s_tmp}")
        A(f"v_xor_b32 v{v_p0}, 1024, v{v_t+1}")
        A(f"s_lshr_b32 s{s_tmp2}, s2, 5")
        A(f"s_lshl_b32 s{s_tmp2}, s{s_tmp2}, 5")
        A(f"v_mov_b32 v{v_t+3}, s{s_tmp2}")
        A(f"s_xor_b32 s{s_sh}, s2, 1")
        A(f"s_and_b32 s{s_sh}, s{s_sh}, 31")
        A(f"s_mov_b32 s{s_have}, 0")
        def read_pok():
            A(f"global_load_dword v{v_P+2}, v{v_t+3}, s[{s_dbg}:{s_dbg+1}] sc0 sc1")
            A("s_waitcnt vmcnt(0)")
            A(f"v_readfirstlane_b32 s{s_pok}, v{v_P+2}")
            A(f"s_lshr_b32 s{s_pok}, s{s_pok}, s{s_sh}")
            A(f"s_and_b32 s{s_pok}, s{s_pok}, 1")
        def fetch_partner():
            A(f"global_load_dwordx4 {vr(pn)}, v{v_p0}, s[{s_ws}:{s_ws+1}] sc0 sc1")
            A("s_waitcnt vmcnt(0)")
            A(f"v_cmp_eq_u32 vcc, 1, v{pn+3}")
            A("s_nop 1")
            A("s_cmp_eq_u64 vcc, -1")
            A(f"s_cselect_b32 s{s_have}, 1, 0")
        read_pok()
        if early:
            thr = 64 * (W * ntrip_total - pollwin)
            A("L_wait:")
            A(f"ds_read_b64 {vr(v_P,2)}, v{v_prog}")
            A("s_waitcnt lgkmcnt(0)")
            A(f"v_readfirstlane_b32 s{s_tmp}, v{v_P+1}")
            A(f"v_readfirstlane_b32 s{s_tmp2}, v{v_P}")
            A(f"s_cmp_ge_u32 s{s_tmp}, {W}")
            A("s_cbranch_scc1 L_all")
            A(f"s_cmp_lt_u32 s{s_tmp2}, {thr}")
            A("s_cbranch_scc1 L_longnap")
            A(f"s_cmp_gt_u32 s{s_pok}, s{s_have}")
            A("s_cbranch_scc0 L_nap")
            fetch_partner()
            A("s_branch L_wait")
            A("L_longnap:")
            A("s_sleep 8")
            A("L_nap:")
            if nap: A(f"s_sleep {nap}")
            A("s_branch L_wait")
            A("L_all:")
        for w in range(W):
            A(f"ds_read_b64 {vr(v_K+2*w,2)}, v{v_t} offset:{RED+512*w}")
        A(f"v_mov_b32 v{v_P}, {RED+W*512}")
        for h in range(W // 4):
            A(f"ds_read_b128 {vr(v_K+16+4*h)}, v{v_P} offset:{16*h}")
        A(f"v_mov_b32 v{v_D+3}, 1")
        A("s_waitcnt lgkmcnt(0)")
        A(f"v_add_f32 v{n0}, v{v_K}, v{v_K+2}")
        A(f"v_add_f32 v{n1}, v{v_K+1}, v{v_K+3}")
        A(f"v_add_f32 v{dn}, v{v_K+16}, v{v_K+17}")
        for w in range(2, W):
            A(f"v_add_f32 v{n0}, v{n0}, v{v_K+2*w}")
            A(f"v_add_f32 v{n1}, v{n1}, v{v_K+2*w+1}")
            A(f"v_add_f32 v{dn}, v{dn}, v{v_K+16+w}")
        A(f"s_cmp_lg_u32 s{s_have}, 0")
        if stamp: A(f"s_cselect_b32 s{s_cnt}, 3, 0")
        A("s_cbranch_scc1 L_comb")
        A(f"global_store_dwordx4 v{v_t+1}, {vr(n0)}, s[{s_ws}:{s_ws+1}] sc0 sc1")
        A("s_waitcnt vmcnt(0)")
        A(f"s_cmp_lg_u32 s{s_pok}, 0")
        A("s_cbranch_scc1 L_look")
        read_pok()
        A(f"s_cmp_eq_u32 s{s_pok}, 0")
        A("s_cbranch_scc1 L_fin")
        A("L_look:")
        fetch_partner()
        A("s_cbranch_scc0 L_fin")
        if stamp: A(f"s_mov_b32 s{s_cnt}, 1")
    else:
        dn = v_K
        A(f"v_lshlrev_b32 v{v_t}, 3, v{v_lane}")
        A(f"s_lshl_b32 s{s_tmp}, s2, 10")
        A(f"v_add_u32 v{v_t+1}, s{s_tmp}, v{v_t}")
        A(f"v_mov_b32 v{v_t+2}, s{s_tmp}")
        A(f"v_xor_b32 v{v_p0}, 1024, v{v_t+1}")
        A(f"v_xor_b32 v{v_p1}, 1024, v{v_t+2}")
        A(f"s_and_b32 s{s_tmp2}, s{s_head}, 0x7c")
        A(f"v_mov_b32 v{v_t+3}, s{s_tmp2}")
        A(f"s_and_b32 s{s_sh}, s{s_head}, 3")
        A(f"s_lshl_b32 s{s_sh}, s{s_sh}, 3")
        A(f"s_mov_b32 s{s_have}, 0")
        if early:
            thr = 64 * (W * ntrip_total - pollwin)
            A("L_wait:")
            A(f"ds_read_b64 {vr(v_P,2)}, v{v_prog}")
            A("s_waitcnt lgkmcnt(0)")
            A(f"v_readfirstlane_b32 s{s_tmp}, v{v_P+1}")
            A(f"v_readfirstlane_b32 s{s_tmp2}, v{v_P}")
            A(f"s_cmp_ge_u32 s{s_tmp}, {W}")
            A("s_cbranch_scc1 L_all")
            A(f"s_cmp_lg_u32 s{s_have}, 0")
            A("s_cbranch_scc1 L_nap")
            A(f"s_cmp_lt_u32 s{s_tmp2}, {thr}")
            A("s_cbranch_scc1 L_longnap")
            A(f"global_load_dword v{v_P+2}, v{v_t+3}, s[{s_dbg}:{s_dbg+1}] sc0 sc1")
            A("s_waitcnt vmcnt(0)")
            A(f"v_readfirstlane_b32 s{s_tmp}, v{v_P+2}")
            A(f"s_lshr_b32 s{s_tmp}, s{s_tmp}, s{s_sh}")
            A(f"s_and_b32 s{s_tmp}, s{s_tmp}, 0xff")
            A(f"s_cmp_eq_u32 s{s_tmp}, 0")
            A("s_cbranch_scc1 L_wait")
            A(f"global_load_dwordx2 {vr(pn,2)}, v{v_p0}, s[{s_ws}:{s_ws+1}] sc0 sc1")
            A(f"global_load_dword v{pd}, v{v_p1}, s[{s_ws}:{s_ws+1}] offset:512 sc0 sc1")
            A(f"s_mov_b32 s{s_have}, 1")
            A("s_branch L_wait")
            A("L_longnap:")
            A("s_sleep 8")
            A("L_nap:")
            A("s_sleep 1")
            A("s_branch L_wait")
            A("L_all:")
        for w in range(W):
            A(f"ds_read_b64 {vr(v_D+2*w,2)}, v{v_t} offset:{RED+512*w}")
        A(f"v_mov_b32 v{v_P}, {RED+W*512}")
        for h in range(W // 4):
            A(f"ds_read_b128 {vr(v_K+4*h)}, v{v_P} offset:{16*h}")
        A(f"s_lshl_b32 s{s_cnt}, 1, s{s_sh}")
        A(f"v_mov_b32 v{v_P+1}, s{s_cnt}")
        A("s_waitcnt lgkmcnt(0)")
        for w in range(1, W):
            A(f"v_add_f32 v{n0}, v{n0}, v{v_D+2*w}")
            A(f"v_add_f32 v{n1}, v{n1}, v{v_D+2*w+1}")
            A(f"v_add_f32 v{dn}, v{dn}, v{v_K+w}")
        A(f"s_cmp_lg_u32 s{s_have}, 0")
        A("s_cbranch_scc1 L_comb")
        A(f"global_store_dwordx2 v{v_t+1}, {vr(n0,2)}, s[{s_ws}:{s_ws+1}] sc0 sc1")
        A(f"s_mov_b64 exec, 1")
        A(f"global_store_dword v{v_t+2}, v{dn}, s[{s_ws}:{s_ws+1}] offset:512 sc0 sc1")
        A("s_waitcnt vmcnt(0)")
        A(f"global_atomic_add v{v_P+2}, v{v_t+3}, v{v_P+1}, s[{s_dbg}:{s_dbg+1}] sc0")
        A("s_waitcnt vmcnt(0)")
        A(f"v_readfirstlane_b32 s{s_cnt}, v{v_P+2}")
        A(f"s_mov_b64 exec, -1")
        A(f"s_lshr_b32 s{s_cnt}, s{s_cnt}, s{s_sh}")
        A(f"s_and_b32 s{s_cnt}, s{s_cnt}, 0xff")
        A(f"s_cmp_eq_u32 s{s_cnt}, 0")
        A("s_cbranch_scc1 L_fin")
        A(f"global_load_dwordx2 {vr(pn,2)}, v{v_p0}, s[{s_ws}:{s_ws+1}] sc0 sc1")
        A(f"global_load_dword v{pd}, v{v_p1}, s[{s_ws}:{s_ws+1}] offset:512 sc0 sc1")
    A("L_comb:")
    A(f"s_lshl_b32 s{s_tmp}, s{s_head}, 8")
    A(f"v_lshlrev_b32 v{v_t}, 2, v{v_lane}")
    A(f"v_add_u32 v{v_t}, s{s_tmp}, v{v_t}")
    A("s_waitcnt vmcnt(0)")
    A(f"v_add_f32 v{n0}, v{n0}, v{pn}")
    A(f"v_add_f32 v{n1}, v{n1}, v{pn+1}")
    A(f"v_add_f32 v{dn}, v{dn}, v{pd}")
    A(f"v_add_f32 v{dn}, {hex(f2u(1e-6))}, v{dn}")
    for i in range(2):
        n = n0 + i
        a, b, c, d_, e = v_P, v_P+1, v_P+2, v_P+3, v_P+4
        A(f"v_div_scale_f32 v{a}, s[{s_ta}:{s_ta+1}], v{dn}, v{dn}, v{n}")
        A(f"v_rcp_f32 v{b}, v{a}")
        A(f"v_div_scale_f32 v{c}, vcc, v{n}, v{dn}, v{n}")
        A(f"v_fma_f32 v{d_}, -v{a}, v{b}, 1.0")
        A(f"v_fma_f32 v{b}, v{d_}, v{b}, v{b}")
        A(f"v_mul_f32 v{d_}, v{c}, v{b}")
        A(f"v_fma_f32 v{e}, -v{a}, v{d_}, v{c}")
        A(f"v_fma_f32 v{d_}, v{e}, v{b}, v{d_}")
        A(f"v_fma_f32 v{a}, -v{a}, v{d_}, v{c}")
        A("s_nop 1")
        A(f"v_div_fmas_f32 v{a}, v{a}, v{b}, v{d_}")
        A(f"v_div_fixup_f32 v{n}, v{a}, v{dn}, v{n}")
    A(f"v_cvt_pk_bf16_f32 v{n0}, v{n0}, v{n1}")
    A(f"global_store_dword v{v_t}, v{n0}, s[{s_out}:{s_out+1}]")
    if stamp and not tagged: A(f"s_lshl_b32 s{s_cnt}, s{s_have}, 1\ns_add_u32 s{s_cnt}, s{s_cnt}, 1")
    A("L_fin:")
    if stamp:
        A("s_waitcnt vmcnt(0)")
        A(f"s_memrealtime s[{s_t1}:{s_t1+1}]")
        A("s_waitcnt lgkmcnt(0)")
        A(f"s_lshl_b32 s{s_tmp}, s2, 4")
        A(f"s_add_u32 s{s_tmp}, s{s_tmp}, {0x180000 + sbase}")
        A(f"v_mov_b32 v{v_D}, s{s_cnt}\nv_mov_b32 v{v_D+1}, s{s_t1}\nv_mov_b32 v{v_D+4}, s{s_tmp}")
        A(f"s_mov_b64 exec, 1")
        A(f"global_store_dwordx2 v{v_D+4}, {vr(v_D,2)}, s[{s_ws}:{s_ws+1}]")
    A("L_done:")
    A("s_endpgm")

    out = HEADER + f"; @launch grid=({NWG},1,1) block=({W*64},1,1) lds={lds}\n"
    out += f'.amdgcn_target "amdgcn-amd-amdhsa--gfx950"\n.text\n.globl {name}\n.p2align 8\n.type {name},@function\n{name}:\n'
    out += A.text()
    out += f""".section .rodata,"a"
.p2align 6
.amdhsa_kernel {name}
  .amdhsa_next_free_vgpr {total}
  .amdhsa_next_free_sgpr 56
  .amdhsa_accum_offset {acc_off}
  .amdhsa_group_segment_fixed_size 0
  .amdhsa_kernarg_size 56
  .amdhsa_user_sgpr_count 2
  .amdhsa_user_sgpr_kernarg_segment_ptr 1
  .amdhsa_system_sgpr_workgroup_id_x 1
  .amdhsa_float_denorm_mode_32 3
.end_amdhsa_kernel
"""
    if meta: out += META.format(name=name, vgpr=total, wg=W*64)
    return out, f"{NWG}:{W*64}:{lds}", total

if __name__ == "__main__":
    if sys.argv[1] == "final":
        kw = eval("dict(" + (sys.argv[3] if len(sys.argv) > 3 else "") + ")")
        t, g, tot = gen(**kw)
        open(sys.argv[2], "w").write(t)
        print(g, "regs", tot)
    else:
        cfgs = eval(open(sys.argv[1]).read())
        specs = []
        for c in cfgs:
            t, g, tot = gen(meta=True, **c)
            n = c["name"]
            open(n + ".s", "w").write(t)
            subprocess.check_call(["clang", "-x", "assembler", "-target", "amdgcn-amd-amdhsa", "-mcpu=gfx950", n + ".s", "-o", n + ".co"])
            specs.append(f"{n}.co:{n}:{g}")
            print(n, "regs", tot, file=sys.stderr)
        open("specs.txt", "w").write(" ".join(specs))
```

```python
import struct, sys, subprocess
from gen import HEADER, META, G, vr, ar, f2u, SCALE, LOG2E

def gen(name="standalone__linear_kernel_rfa__decode_kernel", W=8, mimic=True, pk=False,
        flags="nt", stamp=False, meta=False, sbase=0, ypre=1, vlag=True, early=True, pm=3,
        pollwin=10, nocompute=False, tagged=True, nap=1, trace=False, eb=False, noprol=False, noepi=False, noom=False, oflags='', nofin=False, sched=True, k0first=True, tailv=True, kprio=0, kgrp=True, NY=None, pp=0):
    NWG = 256
    ROWS_WG = 4096
    N = ROWS_WG // 16 // W
    A = G()
    sK, sV, sO, sQ = 8, 12, 16, 20
    s_wave, s_head, s_ko, s_cnt = 3, 24, 25, 26
    s_vo = 27
    s_out, s_dbg, s_ws = 28, 30, 32
    s_scale, s_c1, s_tmp, s_tmp2 = 34, 36, 38, 39
    s_t0, s_t1, s_ta, s_tb, s_tc = 40, 42, 44, 46, 48
    s_sh, s_have, s_pok = 50, 51, 52
    v_lane = 0
    v_ko, v_vo = 1, 2
    v_one, v_nh, v_den, v_p0, v_p1 = 3, 4, 5, 6, 7
    v_sel = 8
    v_pq = 12
    v_c0 = 20
    v_acc = 24
    v_ksq = 28
    v_w = [32, 36]
    v_P = 40
    v_D = 48
    v_A = 64
    v_t = 80
    v_prog = 84
    v_ts = 86
    v_kc = 87 if not mimic else v_one
    v_K = 88
    nv = v_K + 32
    acc_off = (nv + 3) // 4 * 4
    a_om = 0
    a_V = 64
    na = a_V + 32
    total = acc_off + na
    RED = 16384
    CTR = RED + W * 512 + 32
    lds = CTR + 32
    STEP = W * 4096
    FIN = 0
    if NY is not None:
        assert W == 8
        STEP = 4 * 4096
        NO = 64 - NY
        FIN = 4 if NY < NO else 0

    A(f"s_cmp_ge_u32 s2, {NWG}")
    A("s_cbranch_scc1 L_done")
    A("s_load_dwordx8 s[4:11], s[0:1], 0")
    A(f"s_load_dwordx4 s[{s_out}:{s_out+3}], s[0:1], 32")
    A(f"s_load_dwordx2 s[{s_ws}:{s_ws+1}], s[0:1], 48")
    if stamp: A(f"s_memrealtime s[{s_t0}:{s_t0+1}]")
    A(f"v_lshrrev_b32 v{v_t}, 6, v0")
    A(f"v_and_b32 v{v_lane}, 63, v0")
    A(f"v_readfirstlane_b32 s{s_wave}, v{v_t}")
    if eb:
        A(f"v_mov_b32 v{v_prog}, {CTR}")
        A(f"v_mov_b32 v{v_prog+1}, 1")
        A(f"s_cmp_lg_u32 s{s_wave}, 0")
        A("s_cbranch_scc1 L_nz")
        for i in range(4): A(f"v_mov_b32 v{v_P+i}, 0")
        A(f"ds_write_b128 v{v_prog}, {vr(v_P)}")
        A("L_nz:")
    A(f"v_and_b32 v{v_t+1}, 15, v{v_lane}")
    A(f"v_lshrrev_b32 v{v_t+2}, 4, v{v_lane}")
    A(f"v_lshlrev_b32 v{v_ko}, 8, v{v_t+1}")
    A(f"v_lshl_add_u32 v{v_ko}, v{v_t+2}, 4, v{v_ko}")
    A(f"v_lshlrev_b32 v{v_vo}, 10, v{v_t+2}")
    A(f"v_lshl_add_u32 v{v_vo}, v{v_t+1}, 4, v{v_vo}")
    A(f"v_lshlrev_b32 v{v_t+3}, 4, v{v_t+2}")
    if pm == 3:
        A(f"s_lshr_b32 s{s_tmp}, s2, 1")
        A(f"s_and_b32 s{s_tmp2}, s{s_tmp}, 1")
        A(f"s_xor_b32 s{s_tmp}, s{s_tmp}, s2")
        A(f"s_and_b32 s{s_tmp}, s{s_tmp}, 1")
        A(f"s_lshl_b32 s{s_tmp}, s{s_tmp}, 1")
        A(f"s_andn2_b32 s2, s2, 3")
        A(f"s_or_b32 s2, s2, s{s_tmp}")
        A(f"s_or_b32 s2, s2, s{s_tmp2}")
    A(f"s_lshr_b32 s{s_head}, s2, 1")
    A(f"s_lshl_b32 s{s_ko}, s{s_wave}, 12")
    if NY is not None:
        A(f"s_cmp_ge_u32 s{s_wave}, 4")
        A(f"s_cselect_b32 s{s_tmp}, 0, {4*NY*4096}")
        A(f"s_and_b32 s{s_ko}, s{s_ko}, 0x3fff")
        A(f"s_add_u32 s{s_ko}, s{s_ko}, s{s_tmp}")
    A(f"s_mov_b32 s{s_vo}, s{s_ko}")
    A(f"s_lshl_b32 s{s_tmp2}, s2, 20")
    for i in range(4):
        A(f"v_add_u32 v{v_ksq+i}, {4*i}, v{v_t+2}")
        A(f"v_xor_b32 v{v_ksq+i}, v{v_ksq+i}, v{v_t+1}")
        A(f"v_lshlrev_b32 v{v_ksq+i}, 4, v{v_ksq+i}")
        A(f"v_lshl_add_u32 v{v_ksq+i}, v{v_t+2}, 8, v{v_ksq+i}")
    if trace: A(f"s_memrealtime s[{s_t0}:{s_t0+1}]")
    A("s_waitcnt lgkmcnt(0)")
    if eb: A("s_barrier")
    if trace:
        A(f"s_memrealtime s[{s_t1}:{s_t1+1}]")
        A(f"v_writelane_b32 v{v_ts}, s{s_t0}, 32")
    A(f"""s_add_u32 s{sV}, s8, s{s_tmp2}
    s_addc_u32 s{sV+1}, s9, 0
    s_and_b32 s{sV+1}, s{sV+1}, 0xffff
    s_mov_b32 s{sV+2}, {ROWS_WG*256}
    s_mov_b32 s{sV+3}, 0x20000
    s_mov_b32 s{sO}, s10
    s_and_b32 s{sO+1}, s11, 0xffff
    s_mov_b32 s{sO+2}, 16384
    s_mov_b32 s{sO+3}, 0x20000
    s_add_u32 s{sK}, s6, s{s_tmp2}
    s_addc_u32 s{sK+1}, s7, 0
    s_and_b32 s{sK+1}, s{sK+1}, 0xffff
    s_mov_b32 s{sK+2}, {ROWS_WG*256}
    s_mov_b32 s{sK+3}, 0x20000
    s_mov_b32 s{sQ}, s4
    s_and_b32 s{sQ+1}, s5, 0xffff
    s_mov_b32 s{sQ+2}, 32768
    s_mov_b32 s{sQ+3}, 0x20000""")

    def issueK(st):
        if kprio: A(f"s_setprio {kprio}")
        for t in range(4):
            A(f"buffer_load_dwordx4 {vr(v_K+16*st+4*t)}, v{v_ko}, s[{sK}:{sK+3}], s{s_ko} offen offset:{64*t} {flags}")
        if kprio: A("s_setprio 0")
        A(f"s_add_u32 s{s_ko}, s{s_ko}, {STEP}")
    def issueV(st):
        for r in range(4):
            A(f"buffer_load_dwordx4 {ar(a_V+16*st+4*r)}, v{v_vo}, s[{sV}:{sV+3}], s{s_vo} offen offset:{256*r} {flags}")
        A(f"s_add_u32 s{s_vo}, s{s_vo}, {STEP}")
    qreg = v_pq
    def reset_slot():
        if tagged:
            A(f"s_cmp_lg_u32 s{s_wave}, {W-1}")
            A("s_cbranch_scc1 L_norst")
            for i in range(4): A(f"v_mov_b32 v{v_A+i}, 0")
            A(f"s_lshl_b32 s{s_tmp}, s2, 10")
            A(f"v_lshl_add_u32 v{v_A+4}, v{v_lane}, 4, s{s_tmp}")
            A(f"global_store_dwordx4 v{v_A+4}, {vr(v_A)}, s[{s_ws}:{s_ws+1}] sc0 sc1")
            A("L_norst:")
    if ypre >= 0: reset_slot()
    if noom: A("s_branch L_noomq")
    if W > 4:
        A(f"s_cmp_ge_u32 s{s_wave}, 4")
        A("s_cbranch_scc1 L_noom")
    A(f"s_lshl_b32 s{s_tmp2}, s{s_wave}, 12")
    A(f"s_mov_b32 m0, s{s_tmp2}")
    A("s_nop 0")
    for i in range(4):
        A(f"buffer_load_dwordx4 v{v_ksq+i}, s[{sO}:{sO+3}], s{s_tmp2} offen offset:{1024*i} lds")
    if ypre < 0 and W > 4:
        A("s_branch L_omd")
        A("L_noom:")
        A("s_barrier")
        reset_slot()
        A("L_omd:")
    else:
        A("L_noom:")
    A(f"s_lshl_b32 s{s_tmp}, s{s_head}, 8")
    for t in range(4):
        A(f"buffer_load_dwordx4 {vr(qreg+4*t)}, v{v_t+3}, s[{sQ}:{sQ+3}], s{s_tmp} offen offset:{64*t}")
    A("L_noomq:")
    pro = [("K", 0), ("K", 1), ("V", 0)] if vlag else [("K", 0), ("V", 0), ("K", 1), ("V", 1)]
    for idx, (kind, st) in enumerate(pro):
        if idx == ypre and W > 4 and not eb and not noom:
            A(f"s_cmp_lt_u32 s{s_wave}, 4")
            A("s_cbranch_scc1 L_b1")
            A("s_barrier")
            A("L_b1:")
        (issueK if kind == "K" else issueV)(st)
    if ypre >= len(pro) and W > 4 and not eb and not noom:
        A(f"s_cmp_lt_u32 s{s_wave}, 4")
        A("s_cbranch_scc1 L_b1")
        A("s_barrier")
        A("L_b1:")
    npro = 4 * len(pro)
    A(f"s_mov_b32 s{s_scale}, {hex(f2u(SCALE))}")
    A(f"s_mov_b32 s{s_scale+1}, {hex(f2u(SCALE))}")
    c1 = LOG2E if mimic else SCALE * LOG2E
    A(f"s_mov_b32 s{s_c1}, {hex(f2u(c1))}")
    A(f"s_mov_b32 s{s_c1+1}, {hex(f2u(c1))}")
    A(f"v_mov_b32 v{v_den}, 0")
    A(f"v_mov_b32 v{v_p0}, 0x0c0c0302")
    A(f"v_mov_b32 v{v_p1}, 0x03020c0c")
    for q in range(4):
        A(f"v_mov_b32 v{v_sel+q}, 0x0c0c0c0c")
        A(f"v_cmp_eq_u32 vcc, {2*q}, v{v_t+1}")
        A("s_nop 1")
        A(f"v_cndmask_b32 v{v_sel+q}, v{v_sel+q}, v{v_p0}, vcc")
        A(f"v_cmp_eq_u32 vcc, {2*q+1}, v{v_t+1}")
        A("s_nop 1")
        A(f"v_cndmask_b32 v{v_sel+q}, v{v_sel+q}, v{v_p1}, vcc")
    A(f"v_mov_b32 v{v_one}, 1.0")
    if not eb:
        A(f"v_mov_b32 v{v_prog}, {CTR}")
        A(f"v_mov_b32 v{v_prog+1}, 1")
    for t in range(4):
        A(f"v_add_u32 v{v_D+t}, {4*t}, v{v_t+2}")
        A(f"v_xor_b32 v{v_D+t}, v{v_D+t}, v{v_t+1}")
        A(f"v_lshlrev_b32 v{v_D+t}, 4, v{v_D+t}")
        A(f"v_lshl_add_u32 v{v_D+t}, v{v_t+1}, 8, v{v_D+t}")

    def scale_regs(base, n):
        for i in range(n):
            t = v_t + 2 * (i % 2)
            x = base + i
            A(f"v_lshlrev_b32 v{t}, 16, v{x}")
            A(f"v_and_b32 v{t+1}, 0xffff0000, v{x}")
            if pk:
                A(f"v_pk_mul_f32 {vr(t,2)}, {vr(t,2)}, s[{s_scale}:{s_scale+1}]")
            else:
                A(f"v_mul_f32 v{t}, s{s_scale}, v{t}")
                A(f"v_mul_f32 v{t+1}, s{s_scale}, v{t+1}")
            A(f"v_cvt_pk_bf16_f32 v{x}, v{t}, v{t+1}")
    def sumsq(base):
        A(f"v_dot2_f32_bf16 v{v_p0}, v{base}, v{base}, 0")
        A(f"v_dot2_f32_bf16 v{v_p1}, v{base+1}, v{base+1}, 0")
        for i in range(2, 16):
            p = v_p0 if i % 2 == 0 else v_p1
            A(f"v_dot2_f32_bf16 v{p}, v{base+i}, v{base+i}, v{p}")
        A("s_nop 2")
        A(f"v_add_f32 v{v_p0}, v{v_p0}, v{v_p1}")
    def proj(base):
        for t in range(4):
            for mt in range(4):
                c = "0" if t == 0 else vr(v_D + 4 * mt)
                A(f"v_mfma_f32_16x16x32_bf16 {vr(v_D+4*mt)}, {ar(a_om+16*mt+4*t)}, {vr(base+4*t)}, {c}")

    def scale_list(base):
        L = []
        for i in (0, 2):
            x, y = base + i, base + i + 1
            t, u = v_t, v_t + 2
            L += [f"v_lshlrev_b32 v{t}, 16, v{x}", f"v_and_b32 v{t+1}, 0xffff0000, v{x}",
                  f"v_lshlrev_b32 v{u}, 16, v{y}", f"v_and_b32 v{u+1}, 0xffff0000, v{y}"]
            if pk:
                L += [f"v_pk_mul_f32 {vr(t,2)}, {vr(t,2)}, s[{s_scale}:{s_scale+1}]",
                      f"v_pk_mul_f32 {vr(u,2)}, {vr(u,2)}, s[{s_scale}:{s_scale+1}]"]
            else:
                L += [f"v_mul_f32 v{r}, s{s_scale}, v{r}" for r in (t, t+1, u, u+1)]
            L += [f"v_cvt_pk_bf16_f32 v{x}, v{t}, v{t+1}", f"v_cvt_pk_bf16_f32 v{y}, v{u}, v{u+1}"]
        return L
    def dots(base, first):
        L = []
        for i in range(4):
            p = v_p0 if i % 2 == 0 else v_p1
            c = "0" if (first and i < 2) else f"v{p}"
            L.append(f"v_dot2_f32_bf16 v{p}, v{base+i}, v{base+i}, {c}")
        return L
    def M(D, mt, t, kb):
        c = "0" if t == 0 else vr(D + 4 * mt)
        return f"v_mfma_f32_16x16x32_bf16 {vr(D+4*mt)}, {ar(a_om+16*mt+4*t)}, {vr(kb+4*t)}, {c}"
    def kfront(kb, D, ksq, loads, do_scale, one, premfma=None):
        for x in (scale_list(kb) if do_scale else []) + dots(kb, True): A(x)
        if premfma: A(premfma)
        for t in range(1, 4):
            L = (scale_list(kb + 4 * t) if do_scale else []) + dots(kb + 4 * t, False)
            n = len(L)
            for mt in range(4):
                A(M(D, mt, t - 1, kb))
                for x in L[mt * n // 4:(mt + 1) * n // 4]: A(x)
        for mt in range(3): A(M(D, mt, 3, kb))
        A(f"v_add_f32 v{v_p0}, v{v_p0}, v{v_p1}")
        A(M(D, 3, 3, kb))
        if kgrp:
            A(f"s_setprio {kprio}" if kprio else "s_nop 0")
            A(f"v_mfma_f32_16x16x4_f32 {vr(ksq)}, v{one}, v{v_p0}, 0")
            if pp and loads[0].startswith("buffer") and "offset:64" in loads[1]:
                if pp == 1:
                    for x in (loads[0], "s_setprio 3", loads[1], "s_setprio 0", loads[2], "s_setprio 3", loads[3], "s_setprio 0"): A(x)
                else:
                    for x in (loads[0], "s_setprio 3", loads[1], loads[2], loads[3], "s_setprio 0"): A(x)
            else:
                for x in loads[:4]: A(x)
            if kprio: A("s_setprio 0")
            A(loads[4])
        else:
            A(loads[0])
            A(f"v_mfma_f32_16x16x4_f32 {vr(ksq)}, v{one}, v{v_p0}, 0")
            for x in loads[1:]: A(x)
    def kback(wb):
        xs = [v_D + i for i in range(16)]
        if mimic:
            for x in xs: A(f"v_cvt_pk_bf16_f32 v{x}, 0, v{x}")
            A(f"v_cvt_pk_bf16_f32 v{v_nh}, 0, v{v_ksq}")
            A(f"v_mul_f32 v{v_nh}, -0.5, v{v_nh}")
        else:
            A("s_nop 5")
        for h in range(2):
            ys = xs[8 * h:8 * h + 8]
            if mimic:
                if pk:
                    for i in range(0, 8, 2): A(f"v_pk_add_f32 {vr(ys[i],2)}, {vr(ys[i],2)}, {vr(v_nh,2)} op_sel_hi:[1,0]")
                else:
                    for x in ys: A(f"v_add_f32 v{x}, v{x}, v{v_nh}")
                for x in ys: A(f"v_cvt_pk_bf16_f32 v{x}, 0, v{x}")
                if pk:
                    for i in range(0, 8, 2): A(f"v_pk_mul_f32 {vr(ys[i],2)}, {vr(ys[i],2)}, s[{s_c1}:{s_c1+1}]")
                else:
                    for x in ys: A(f"v_mul_f32 v{x}, s{s_c1}, v{x}")
            else:
                for x in ys: A(f"v_fma_f32 v{x}, v{x}, s{s_c1}, v{v_ksq}")
            for x in ys: A(f"v_exp_f32 v{x}, v{x}")
            for i in range(4):
                A(f"v_cvt_pk_bf16_f32 v{v_P+4*h+i}, v{ys[2*i]}, v{ys[2*i+1]}")
            if h == 0:
                pass
        w = v_w[wb]
        A(f"v_mfma_f32_16x16x32_bf16 {vr(w)}, {vr(v_P)}, {vr(v_pq)}, {vr(v_c0)}")
        A("s_nop 0")
        A(f"v_mfma_f32_16x16x32_bf16 {vr(w)}, {vr(v_P+4)}, {vr(v_pq+4)}, {vr(w)}")
    def kloads(st):
        return [f"buffer_load_dwordx4 {vr(v_K+16*st+4*t)}, v{v_ko}, s[{sK}:{sK+3}], s{s_ko} offen offset:{64*t} {flags}" for t in range(4)] + [f"s_add_u32 s{s_ko}, s{s_ko}, {STEP}"]
    def vloads_into_k(st):
        return [f"buffer_load_dwordx4 {vr(v_K+16*st+4*r)}, v{v_vo}, s[{sV}:{sV+3}], s{s_vo} offen offset:{256*r} {flags}" for r in range(4)] + ["s_nop 0"]
    if early and not eb:
        A(f"s_cmp_lg_u32 s{s_wave}, 0")
        A("s_cbranch_scc1 L_nz")
        A(f"v_mov_b32 v{v_P}, 0")
        A(f"v_mov_b32 v{v_P+1}, 0")
        A(f"ds_write_b64 v{v_prog}, {vr(v_P,2)}")
        A("L_nz:")
    A(f"s_waitcnt vmcnt({npro}) lgkmcnt(0)")
    if trace:
        A(f"v_writelane_b32 v{v_ts}, s{s_t1}, 33")
        A(f"s_memrealtime s[{s_t0}:{s_t0+1}]")
    if eb:
        if W > 4:
            A(f"s_cmp_ge_u32 s{s_wave}, 4")
            A("s_cbranch_scc1 L_b2")
        A("s_mov_b64 exec, 1")
        A(f"ds_add_u32 v{v_prog}, v{v_prog+1} offset:8")
        A("s_mov_b64 exec, -1")
        A("L_b2:")
        A(f"ds_read_b32 v{v_P}, v{v_prog} offset:8")
        A("s_waitcnt lgkmcnt(0)")
        A(f"v_readfirstlane_b32 s{s_tmp}, v{v_P}")
        A(f"s_cmp_lt_u32 s{s_tmp}, 4")
        A("s_cbranch_scc1 L_b2")
    elif not noom:
        if W > 4:
            A(f"s_cmp_ge_u32 s{s_wave}, 4")
            A("s_cbranch_scc1 L_b2")
        A("s_barrier")
        A("L_b2:")
    if tagged:
        A(f"s_cmp_lg_u32 s{s_wave}, {W-1}")
        A("s_cbranch_scc1 L_noann")
        A(f"s_and_b32 s{s_tmp}, s2, 31")
        A(f"s_lshl_b32 s{s_tmp}, 1, s{s_tmp}")
        A(f"s_lshr_b32 s{s_tmp2}, s2, 5")
        A(f"s_lshl_b32 s{s_tmp2}, s{s_tmp2}, 5")
        A(f"v_mov_b32 v{v_A}, s{s_tmp}")
        A(f"v_mov_b32 v{v_A+1}, s{s_tmp2}")
        A("s_mov_b64 exec, 1")
        A(f"global_atomic_or v{v_A+1}, v{v_A}, s[{s_dbg}:{s_dbg+1}]")
        A("s_mov_b64 exec, -1")
        A("L_noann:")
    if noprol: A("s_branch L_skipq")
    for mt in range(4):
        for t in range(4):
            A(f"ds_read_b128 {ar(a_om+16*mt+4*t)}, v{v_D+t} offset:{4096*mt}")
    K0F = k0first and sched and vlag and not nocompute and not noprol
    if K0F:
        if not mimic: A(f"v_mov_b32 v{v_kc}, {hex(f2u(-0.5*SCALE*SCALE*LOG2E))}")
        A(f"s_waitcnt vmcnt({npro-4})")
        kfront(v_K, v_D, v_ksq, kloads(0), mimic, v_kc, premfma="s_waitcnt lgkmcnt(0)")
        issueV(1)
        QD, QS = v_A, v_w[1]
        kfront(qreg, QD, QS, ["s_nop 0"] * 5, True, v_one)
        A("s_nop 5")
    else:
        QD, QS = v_D, v_ksq
        scale_regs(qreg, 16)
        sumsq(qreg)
        A("s_nop 1")
        A(f"v_mfma_f32_16x16x4_f32 {vr(v_ksq)}, v{v_one}, v{v_p0}, 0")
        A(f"s_waitcnt lgkmcnt(0)")
        if stamp: A(f"s_memrealtime s[{s_ta}:{s_ta+1}]")
        proj(qreg)
        A("s_nop 7")
    A(f"v_cvt_pk_bf16_f32 v{v_nh}, 0, v{QS}")
    A(f"v_mul_f32 v{v_nh}, -0.5, v{v_nh}")
    A(f"s_mov_b32 s{s_tmp}, {hex(f2u(LOG2E))}")
    A(f"s_mov_b32 s{s_tmp2}, {hex(f2u(1e-6))}")
    A(f"v_mov_b32 v{v_p1}, 0")
    for mt in range(4):
        xs = [QD + 4 * mt + r for r in range(4)]
        for x in xs: A(f"v_cvt_pk_bf16_f32 v{x}, 0, v{x}")
        for x in xs: A(f"v_add_f32 v{x}, v{x}, v{v_nh}")
        for x in xs: A(f"v_cvt_pk_bf16_f32 v{x}, 0, v{x}")
        for x in xs: A(f"v_mul_f32 v{x}, s{s_tmp}, v{x}")
        for x in xs: A(f"v_exp_f32 v{x}, v{x}")
        A("s_nop 0")
        for x in xs: A(f"v_cvt_pk_bf16_f32 v{x}, 0, v{x}")
        for x in xs: A(f"v_mul_f32 v{x}, 0x3e000000, v{x}")
        for x in xs: A(f"v_add_f32 v{x}, s{s_tmp2}, v{x}")
        for x in xs: A(f"v_cvt_pk_bf16_f32 v{x}, 0, v{x}")
        for x in xs: A(f"v_add_f32 v{v_p1}, v{v_p1}, v{x}")
        for x in xs: A(f"v_mul_f32 v{x}, 0x3e000000, v{x}")
    for i in range(8):
        A(f"v_cvt_pk_bf16_f32 v{v_pq+i}, v{QD+2*i}, v{QD+2*i+1}")
    A(f"v_mul_f32 v{v_p1}, s{s_tmp2}, v{v_p1}")
    A("s_nop 1")
    A(f"v_mfma_f32_16x16x4_f32 {vr(v_c0)}, v{v_one}, v{v_p1}, 0")
    A("L_skipq:")
    for r in range(4): A(f"v_mov_b32 v{v_acc+r}, 0")
    if not mimic:
        A(f"v_mov_b32 v{v_one if not sched else v_kc}, {hex(f2u(-0.5*SCALE*SCALE*LOG2E))}")
    if stamp: A(f"s_memrealtime s[{s_tb}:{s_tb+1}]\ns_mov_b32 s{s_tc}, 0")
    if trace:
        A(f"v_writelane_b32 v{v_ts}, s{s_t0}, 34")
        A(f"s_memrealtime s[{s_tc}:{s_tc+1}]")

    def kphase2(st, wait, issue, wb):
        kb = v_K + 16 * st
        A(f"s_waitcnt vmcnt({wait})")
        loads = kloads(st) if issue is True else (vloads_into_k(st) if issue == "V" else ["s_nop 0"] * 5)
        kfront(kb, v_D, v_ksq, loads, mimic, v_kc)
        kback(wb)
    def kphase1(st, wait, issue, wb):
        kb = v_K + 16 * st
        A(f"s_waitcnt vmcnt({wait})")
        if nocompute:
            if issue: issueK(st)
            return
        if mimic: scale_regs(kb, 16)
        sumsq(kb)
        A("s_nop 1")
        A(f"v_mfma_f32_16x16x4_f32 {vr(v_ksq)}, v{v_one}, v{v_p0}, 0")
        proj(kb)
        if issue: issueK(st)
        else: A("s_nop 4")
        if mimic:
            A(f"v_cvt_pk_bf16_f32 v{v_nh}, 0, v{v_ksq}")
            A(f"v_mul_f32 v{v_nh}, -0.5, v{v_nh}")
            A("s_nop 0")
        else:
            A("s_nop 2")
        for mt in range(4):
            xs = [v_D + 4 * mt + r for r in range(4)]
            if mimic:
                for x in xs: A(f"v_cvt_pk_bf16_f32 v{x}, 0, v{x}")
                if pk:
                    for h in range(2): A(f"v_pk_add_f32 {vr(xs[2*h],2)}, {vr(xs[2*h],2)}, {vr(v_nh,2)} op_sel_hi:[1,0]")
                else:
                    for x in xs: A(f"v_add_f32 v{x}, v{x}, v{v_nh}")
                for x in xs: A(f"v_cvt_pk_bf16_f32 v{x}, 0, v{x}")
                if pk:
                    for h in range(2): A(f"v_pk_mul_f32 {vr(xs[2*h],2)}, {vr(xs[2*h],2)}, s[{s_c1}:{s_c1+1}]")
                else:
                    for x in xs: A(f"v_mul_f32 v{x}, s{s_c1}, v{x}")
            else:
                for x in xs: A(f"v_fma_f32 v{x}, v{x}, s{s_c1}, v{v_ksq}")
            for x in xs: A(f"v_exp_f32 v{x}, v{x}")
            A("s_nop 0")
            A(f"v_cvt_pk_bf16_f32 v{v_P+2*mt}, v{xs[0]}, v{xs[1]}")
            A(f"v_cvt_pk_bf16_f32 v{v_P+2*mt+1}, v{xs[2]}, v{xs[3]}")
        A("s_nop 1")
        w = v_w[wb]
        A(f"v_mfma_f32_16x16x32_bf16 {vr(w)}, {vr(v_P)}, {vr(v_pq)}, {vr(v_c0)}")
        A(f"v_mfma_f32_16x16x32_bf16 {vr(w)}, {vr(v_P+4)}, {vr(v_pq+4)}, {vr(w)}")
    kphase = kphase2 if (sched and not nocompute) else kphase1
    def vphase(st, wait, issue, wb, pad, fromk=None):
        vb = a_V + 16 * st
        w = v_w[wb]
        if not nocompute:
            if pad: A("s_nop 7")
            for r in range(4): A(f"v_cvt_pk_bf16_f32 v{w+r}, 0, v{w+r}")
            for r in range(4):
                for q in range(4):
                    A(f"v_perm_b32 v{v_A+4*r+q}, v{w+r}, v{w+r}, v{v_sel+q}")
            for r in range(4): A(f"v_add_f32 v{v_den}, v{v_den}, v{w+r}")
        A(f"s_waitcnt vmcnt({wait})")
        if not nocompute:
            for r in range(4):
                src = ar(vb+4*r) if fromk is None else vr(v_K+16*fromk+4*r)
                A(f"v_mfma_f32_16x16x32_bf16 {vr(v_acc)}, {vr(v_A+4*r)}, {src}, {vr(v_acc)}")
        if issue: issueV(st)
    def loop_tail():
        if trace:
            A("s_waitcnt lgkmcnt(0)")
            A(f"s_mov_b32 m0, s{s_cnt}")
            A("s_nop 0")
            A(f"v_writelane_b32 v{v_ts}, s{s_tc}, m0")
            A(f"s_memrealtime s[{s_tc}:{s_tc+1}]")
        if early: A(f"ds_add_u32 v{v_prog}, v{v_prog+1}")
        if stamp:
            A(f"s_cmp_lg_u32 s{s_tc}, 0\ns_cbranch_scc1 L_st1\ns_memrealtime s[{s_tc}:{s_tc+1}]\ns_waitcnt lgkmcnt(0)\nL_st1:")
        A(f"s_sub_u32 s{s_cnt}, s{s_cnt}, 1")
        A(f"s_cmp_lg_u32 s{s_cnt}, 0")
        A("s_cbranch_scc1 L_loop")

    if vlag:
        A("s_nop 3")
        if K0F:
            kback(0)
        else:
            kphase(0, 8, True, 0)
            issueV(1)
        TV = tailv and sched and not nocompute
        trips = (N - 4) // 2 if TV else (N - 2) // 2
        if NY is not None:
            assert TV
            ty, to = (NY - 4) // 2, (NO - 4) // 2
            A(f"s_cmp_ge_u32 s{s_wave}, 4")
            A(f"s_cselect_b32 s{s_cnt}, {ty}, {to}")
            if ty == 0: A("s_cbranch_scc1 L_tail")
            trips = (ty + to) / 2
        else:
            A(f"s_mov_b32 s{s_cnt}, {trips}")
        A(".p2align 6")
        A("L_loop:")
        kphase(1, 12, True, 1); vphase(0, 12, True, 0, False)
        kphase(0, 12, True, 0); vphase(1, 12, True, 1, False)
        loop_tail()
        A("L_tail:")
        if TV:
            kphase(1, 12, True, 1); vphase(0, 12, True, 0, False)
            kphase(0, 12, "V", 0); vphase(1, 12, False, 1, False)
            kphase(1, 8, False, 1)
            vphase(0, 4, False, 0, False)
            vphase(1, 0, False, 1, True, fromk=0)
        else:
            kphase(1, 12, False, 1)
            vphase(0, 8, False, 0, False)
            vphase(1, 0, False, 1, True)
        ntrip_total = trips
    else:
        A("s_nop 7")
        A(f"s_mov_b32 s{s_cnt}, {N // 2}")
        A(".p2align 6")
        A("L_loop:")
        for st in range(2):
            kphase(st, 12, True, 0); vphase(st, 12, True, 0, True)
        loop_tail()
        ntrip_total = N // 2

    if trace:
        A("s_waitcnt lgkmcnt(0)")
        A(f"v_writelane_b32 v{v_ts}, s{s_tc}, 0")
        A(f"s_memrealtime s[{s_tc}:{s_tc+1}]")
        A("s_waitcnt lgkmcnt(0)")
        A(f"v_writelane_b32 v{v_ts}, s{s_tc}, 35")
        A(f"s_mul_i32 s{s_tmp}, s2, {W}\ns_add_u32 s{s_tmp}, s{s_tmp}, s{s_wave}\ns_lshl_b32 s{s_tmp}, s{s_tmp}, 8")
        A(f"s_add_u32 s{s_tmp}, s{s_tmp}, {0x100000 + sbase}")
        A(f"v_lshl_add_u32 v{v_ts+1}, v{v_lane}, 2, s{s_tmp}")
        A(f"global_store_dword v{v_ts+1}, v{v_ts}, s[{s_ws}:{s_ws+1}]")
    if noepi: A("s_endpgm")
    A(f"v_mov_b32 v{v_one}, 1.0")
    A(f"v_and_b32 v{v_t+1}, 15, v{v_lane}")
    A(f"v_lshrrev_b32 v{v_t+2}, 4, v{v_lane}")
    A(f"v_mfma_f32_16x16x4_f32 {vr(v_ksq)}, v{v_one}, v{v_den}, 0")
    A(f"v_lshlrev_b32 v{v_t}, 5, v{v_t+1}")
    A(f"v_lshl_add_u32 v{v_t}, v{v_t+2}, 4, v{v_t}")
    A(f"s_lshl_b32 s{s_tmp}, s{s_wave}, 9")
    A(f"s_add_u32 s{s_tmp}, s{s_tmp}, {RED}")
    A(f"v_add_u32 v{v_t}, s{s_tmp}, v{v_t}")
    A(f"s_lshl_b32 s{s_tmp}, s{s_wave}, 2")
    A(f"s_add_u32 s{s_tmp}, s{s_tmp}, {RED+W*512}")
    A(f"v_mov_b32 v{v_t+3}, s{s_tmp}")
    A(f"s_mov_b32 exec_hi, 0")
    A(f"ds_write_b128 v{v_t}, {vr(v_acc)}")
    A(f"s_mov_b64 exec, 1")
    A(f"ds_write_b32 v{v_t+3}, v{v_ksq}")
    if stamp:
        A("s_waitcnt vmcnt(0) lgkmcnt(0)")
        A(f"s_memrealtime s[{s_t1}:{s_t1+1}]")
        A("s_waitcnt lgkmcnt(0)")
        A(f"s_mul_i32 s{s_tmp}, s2, {W}\ns_add_u32 s{s_tmp}, s{s_tmp}, s{s_wave}\ns_lshl_b32 s{s_tmp}, s{s_tmp}, 5")
        A(f"s_add_u32 s{s_tmp}, s{s_tmp}, {0x100000 + sbase}")
        A(f"s_getreg_b32 s{s_tmp2}, hwreg(HW_REG_XCC_ID)")
        A(f"v_mov_b32 v{v_D}, s{s_t0}\nv_mov_b32 v{v_D+1}, s{s_t1}\nv_mov_b32 v{v_D+2}, s{s_tmp2}\nv_mov_b32 v{v_D+3}, s{s_ta}\nv_mov_b32 v{v_D+4}, s{s_tb}\nv_mov_b32 v{v_D+5}, s{s_tc}\nv_mov_b32 v{v_D+8}, s{s_tmp}")
        A(f"global_store_dwordx4 v{v_D+8}, {vr(v_D)}, s[{s_ws}:{s_ws+1}]")
        A(f"global_store_dwordx4 v{v_D+8}, {vr(v_D+4)}, s[{s_ws}:{s_ws+1}] offset:16")
    if early:
        A(f"ds_add_u32 v{v_prog}, v{v_prog+1} offset:4")
        A(f"s_mov_b64 exec, -1")
    else:
        A(f"s_mov_b64 exec, -1")
        A("s_waitcnt lgkmcnt(0)")
        A("s_barrier")
    A(f"s_cmp_lg_u32 s{s_wave}, {FIN}")
    A("s_cbranch_scc1 L_done")
    if nofin: A("s_endpgm")
    n0, n1, dn = v_D, v_D + 1, v_D + 2
    pn, pd = v_A, v_A + 2
    if tagged:
        A(f"v_lshlrev_b32 v{v_t}, 3, v{v_lane}")
        A(f"s_lshl_b32 s{s_tmp}, s2, 10")
        A(f"v_lshl_add_u32 v{v_t+1}, v{v_lane}, 4, s{s_tmp}")
        A(f"v_xor_b32 v{v_p0}, 1024, v{v_t+1}")
        A(f"s_lshr_b32 s{s_tmp2}, s2, 5")
        A(f"s_lshl_b32 s{s_tmp2}, s{s_tmp2}, 5")
        A(f"v_mov_b32 v{v_t+3}, s{s_tmp2}")
        A(f"s_xor_b32 s{s_sh}, s2, 1")
        A(f"s_and_b32 s{s_sh}, s{s_sh}, 31")
        A(f"s_mov_b32 s{s_have}, 0")
        def read_pok():
            A(f"global_load_dword v{v_P+2}, v{v_t+3}, s[{s_dbg}:{s_dbg+1}] sc0 sc1")
            A("s_waitcnt vmcnt(0)")
            A(f"v_readfirstlane_b32 s{s_pok}, v{v_P+2}")
            A(f"s_lshr_b32 s{s_pok}, s{s_pok}, s{s_sh}")
            A(f"s_and_b32 s{s_pok}, s{s_pok}, 1")
        def fetch_partner():
            A(f"global_load_dwordx4 {vr(pn)}, v{v_p0}, s[{s_ws}:{s_ws+1}] sc0 sc1")
            A("s_waitcnt vmcnt(0)")
            A(f"v_cmp_eq_u32 vcc, 1, v{pn+3}")
            A("s_nop 1")
            A("s_cmp_eq_u64 vcc, -1")
            A(f"s_cselect_b32 s{s_have}, 1, 0")
        read_pok()
        if early:
            thr = int(64 * (W * ntrip_total - pollwin))
            A("L_wait:")
            A(f"ds_read_b64 {vr(v_P,2)}, v{v_prog}")
            A("s_waitcnt lgkmcnt(0)")
            A(f"v_readfirstlane_b32 s{s_tmp}, v{v_P+1}")
            A(f"v_readfirstlane_b32 s{s_tmp2}, v{v_P}")
            A(f"s_cmp_ge_u32 s{s_tmp}, {W}")
            A("s_cbranch_scc1 L_all")
            A(f"s_cmp_lt_u32 s{s_tmp2}, {thr}")
            A("s_cbranch_scc1 L_longnap")
            A(f"s_cmp_gt_u32 s{s_pok}, s{s_have}")
            A("s_cbranch_scc0 L_nap")
            fetch_partner()
            A("s_branch L_wait")
            A("L_longnap:")
            A("s_sleep 8")
            A("L_nap:")
            if nap: A(f"s_sleep {nap}")
            A("s_branch L_wait")
            A("L_all:")
        for w in range(W):
            A(f"ds_read_b64 {vr(v_K+2*w,2)}, v{v_t} offset:{RED+512*w}")
        A(f"v_mov_b32 v{v_P}, {RED+W*512}")
        for h in range(W // 4):
            A(f"ds_read_b128 {vr(v_K+16+4*h)}, v{v_P} offset:{16*h}")
        A(f"v_mov_b32 v{v_D+3}, 1")
        A("s_waitcnt lgkmcnt(0)")
        A(f"v_add_f32 v{n0}, v{v_K}, v{v_K+2}")
        A(f"v_add_f32 v{n1}, v{v_K+1}, v{v_K+3}")
        A(f"v_add_f32 v{dn}, v{v_K+16}, v{v_K+17}")
        for w in range(2, W):
            A(f"v_add_f32 v{n0}, v{n0}, v{v_K+2*w}")
            A(f"v_add_f32 v{n1}, v{n1}, v{v_K+2*w+1}")
            A(f"v_add_f32 v{dn}, v{dn}, v{v_K+16+w}")
        A(f"s_cmp_lg_u32 s{s_have}, 0")
        if stamp: A(f"s_cselect_b32 s{s_cnt}, 3, 0")
        A("s_cbranch_scc1 L_comb")
        A(f"global_store_dwordx4 v{v_t+1}, {vr(n0)}, s[{s_ws}:{s_ws+1}] sc0 sc1")
        A("s_waitcnt vmcnt(0)")
        A(f"s_cmp_lg_u32 s{s_pok}, 0")
        A("s_cbranch_scc1 L_look")
        read_pok()
        A(f"s_cmp_eq_u32 s{s_pok}, 0")
        A("s_cbranch_scc1 L_fin")
        A("L_look:")
        fetch_partner()
        A("s_cbranch_scc0 L_fin")
        if stamp: A(f"s_mov_b32 s{s_cnt}, 1")
    else:
        dn = v_K
        A(f"v_lshlrev_b32 v{v_t}, 3, v{v_lane}")
        A(f"s_lshl_b32 s{s_tmp}, s2, 10")
        A(f"v_add_u32 v{v_t+1}, s{s_tmp}, v{v_t}")
        A(f"v_mov_b32 v{v_t+2}, s{s_tmp}")
        A(f"v_xor_b32 v{v_p0}, 1024, v{v_t+1}")
        A(f"v_xor_b32 v{v_p1}, 1024, v{v_t+2}")
        A(f"s_and_b32 s{s_tmp2}, s{s_head}, 0x7c")
        A(f"v_mov_b32 v{v_t+3}, s{s_tmp2}")
        A(f"s_and_b32 s{s_sh}, s{s_head}, 3")
        A(f"s_lshl_b32 s{s_sh}, s{s_sh}, 3")
        A(f"s_mov_b32 s{s_have}, 0")
        if early:
            thr = int(64 * (W * ntrip_total - pollwin))
            A("L_wait:")
            A(f"ds_read_b64 {vr(v_P,2)}, v{v_prog}")
            A("s_waitcnt lgkmcnt(0)")
            A(f"v_readfirstlane_b32 s{s_tmp}, v{v_P+1}")
            A(f"v_readfirstlane_b32 s{s_tmp2}, v{v_P}")
            A(f"s_cmp_ge_u32 s{s_tmp}, {W}")
            A("s_cbranch_scc1 L_all")
            A(f"s_cmp_lg_u32 s{s_have}, 0")
            A("s_cbranch_scc1 L_nap")
            A(f"s_cmp_lt_u32 s{s_tmp2}, {thr}")
            A("s_cbranch_scc1 L_longnap")
            A(f"global_load_dword v{v_P+2}, v{v_t+3}, s[{s_dbg}:{s_dbg+1}] sc0 sc1")
            A("s_waitcnt vmcnt(0)")
            A(f"v_readfirstlane_b32 s{s_tmp}, v{v_P+2}")
            A(f"s_lshr_b32 s{s_tmp}, s{s_tmp}, s{s_sh}")
            A(f"s_and_b32 s{s_tmp}, s{s_tmp}, 0xff")
            A(f"s_cmp_eq_u32 s{s_tmp}, 0")
            A("s_cbranch_scc1 L_wait")
            A(f"global_load_dwordx2 {vr(pn,2)}, v{v_p0}, s[{s_ws}:{s_ws+1}] sc0 sc1")
            A(f"global_load_dword v{pd}, v{v_p1}, s[{s_ws}:{s_ws+1}] offset:512 sc0 sc1")
            A(f"s_mov_b32 s{s_have}, 1")
            A("s_branch L_wait")
            A("L_longnap:")
            A("s_sleep 8")
            A("L_nap:")
            A("s_sleep 1")
            A("s_branch L_wait")
            A("L_all:")
        for w in range(W):
            A(f"ds_read_b64 {vr(v_D+2*w,2)}, v{v_t} offset:{RED+512*w}")
        A(f"v_mov_b32 v{v_P}, {RED+W*512}")
        for h in range(W // 4):
            A(f"ds_read_b128 {vr(v_K+4*h)}, v{v_P} offset:{16*h}")
        A(f"s_lshl_b32 s{s_cnt}, 1, s{s_sh}")
        A(f"v_mov_b32 v{v_P+1}, s{s_cnt}")
        A("s_waitcnt lgkmcnt(0)")
        for w in range(1, W):
            A(f"v_add_f32 v{n0}, v{n0}, v{v_D+2*w}")
            A(f"v_add_f32 v{n1}, v{n1}, v{v_D+2*w+1}")
            A(f"v_add_f32 v{dn}, v{dn}, v{v_K+w}")
        A(f"s_cmp_lg_u32 s{s_have}, 0")
        A("s_cbranch_scc1 L_comb")
        A(f"global_store_dwordx2 v{v_t+1}, {vr(n0,2)}, s[{s_ws}:{s_ws+1}] sc0 sc1")
        A(f"s_mov_b64 exec, 1")
        A(f"global_store_dword v{v_t+2}, v{dn}, s[{s_ws}:{s_ws+1}] offset:512 sc0 sc1")
        A("s_waitcnt vmcnt(0)")
        A(f"global_atomic_add v{v_P+2}, v{v_t+3}, v{v_P+1}, s[{s_dbg}:{s_dbg+1}] sc0")
        A("s_waitcnt vmcnt(0)")
        A(f"v_readfirstlane_b32 s{s_cnt}, v{v_P+2}")
        A(f"s_mov_b64 exec, -1")
        A(f"s_lshr_b32 s{s_cnt}, s{s_cnt}, s{s_sh}")
        A(f"s_and_b32 s{s_cnt}, s{s_cnt}, 0xff")
        A(f"s_cmp_eq_u32 s{s_cnt}, 0")
        A("s_cbranch_scc1 L_fin")
        A(f"global_load_dwordx2 {vr(pn,2)}, v{v_p0}, s[{s_ws}:{s_ws+1}] sc0 sc1")
        A(f"global_load_dword v{pd}, v{v_p1}, s[{s_ws}:{s_ws+1}] offset:512 sc0 sc1")
    A("L_comb:")
    A(f"s_lshl_b32 s{s_tmp}, s{s_head}, 8")
    A(f"v_lshlrev_b32 v{v_t}, 2, v{v_lane}")
    A(f"v_add_u32 v{v_t}, s{s_tmp}, v{v_t}")
    A("s_waitcnt vmcnt(0)")
    A(f"v_add_f32 v{n0}, v{n0}, v{pn}")
    A(f"v_add_f32 v{n1}, v{n1}, v{pn+1}")
    A(f"v_add_f32 v{dn}, v{dn}, v{pd}")
    A(f"v_add_f32 v{dn}, {hex(f2u(1e-6))}, v{dn}")
    for i in range(2):
        n = n0 + i
        a, b, c, d_, e = v_P, v_P+1, v_P+2, v_P+3, v_P+4
        A(f"v_div_scale_f32 v{a}, s[{s_ta}:{s_ta+1}], v{dn}, v{dn}, v{n}")
        A(f"v_rcp_f32 v{b}, v{a}")
        A(f"v_div_scale_f32 v{c}, vcc, v{n}, v{dn}, v{n}")
        A(f"v_fma_f32 v{d_}, -v{a}, v{b}, 1.0")
        A(f"v_fma_f32 v{b}, v{d_}, v{b}, v{b}")
        A(f"v_mul_f32 v{d_}, v{c}, v{b}")
        A(f"v_fma_f32 v{e}, -v{a}, v{d_}, v{c}")
        A(f"v_fma_f32 v{d_}, v{e}, v{b}, v{d_}")
        A(f"v_fma_f32 v{a}, -v{a}, v{d_}, v{c}")
        A("s_nop 1")
        A(f"v_div_fmas_f32 v{a}, v{a}, v{b}, v{d_}")
        A(f"v_div_fixup_f32 v{n}, v{a}, v{dn}, v{n}")
    A(f"v_cvt_pk_bf16_f32 v{n0}, v{n0}, v{n1}")
    A(f"global_store_dword v{v_t}, v{n0}, s[{s_out}:{s_out+1}] {oflags}")
    if stamp and not tagged: A(f"s_lshl_b32 s{s_cnt}, s{s_have}, 1\ns_add_u32 s{s_cnt}, s{s_cnt}, 1")
    A("L_fin:")
    if stamp:
        A("s_waitcnt vmcnt(0)")
        A(f"s_memrealtime s[{s_t1}:{s_t1+1}]")
        A("s_waitcnt lgkmcnt(0)")
        A(f"s_lshl_b32 s{s_tmp}, s2, 4")
        A(f"s_add_u32 s{s_tmp}, s{s_tmp}, {0x180000 + sbase}")
        A(f"v_mov_b32 v{v_D}, s{s_cnt}\nv_mov_b32 v{v_D+1}, s{s_t1}\nv_mov_b32 v{v_D+4}, s{s_tmp}")
        A(f"s_mov_b64 exec, 1")
        A(f"global_store_dwordx2 v{v_D+4}, {vr(v_D,2)}, s[{s_ws}:{s_ws+1}]")
    A("L_done:")
    A("s_endpgm")

    out = HEADER + f"; @launch grid=({NWG},1,1) block=({W*64},1,1) lds={lds}\n"
    out += f'.amdgcn_target "amdgcn-amd-amdhsa--gfx950"\n.text\n.globl {name}\n.p2align 8\n.type {name},@function\n{name}:\n'
    out += A.text()
    out += f""".section .rodata,"a"
.p2align 6
.amdhsa_kernel {name}
  .amdhsa_next_free_vgpr {total}
  .amdhsa_next_free_sgpr 56
  .amdhsa_accum_offset {acc_off}
  .amdhsa_group_segment_fixed_size 0
  .amdhsa_kernarg_size 56
  .amdhsa_user_sgpr_count 2
  .amdhsa_user_sgpr_kernarg_segment_ptr 1
  .amdhsa_system_sgpr_workgroup_id_x 1
  .amdhsa_float_denorm_mode_32 3
.end_amdhsa_kernel
"""
    if meta: out += META.format(name=name, vgpr=total, wg=W*64)
    return out, f"{NWG}:{W*64}:{lds}", total

if __name__ == "__main__":
    if sys.argv[1] == "final":
        kw = eval("dict(" + (sys.argv[3] if len(sys.argv) > 3 else "") + ")")
        t, g, tot = gen(**kw)
        open(sys.argv[2], "w").write(t)
        print(g, "regs", tot)
    else:
        cfgs = eval(open(sys.argv[1]).read())
        specs = []
        for c in cfgs:
            t, g, tot = gen(meta=True, **c)
            n = c["name"]
            open(n + ".s", "w").write(t)
            subprocess.check_call(["clang", "-x", "assembler", "-target", "amdgcn-amd-amdhsa", "-mcpu=gfx950", n + ".s", "-o", n + ".co"])
            specs.append(f"{n}.co:{n}:{g}")
            print(n, "regs", tot, file=sys.stderr)
        open("specs.txt", "w").write(" ".join(specs))
```

```python
import sys, subprocess
from gen import HEADER, META, G, vr, ar, f2u, SCALE, LOG2E

def gen(name="standalone__linear_kernel_rfa__decode_kernel", mimic=True, pk=False, flags="nt", meta=False,
        pm=3, pollwin=6, VD=2, ilv=True, trace=False, sbase=0, noload=False, nap=1, dot=False, ybar=True):
    W, NWG, NT = 8, 256, 256
    A = G()
    sK, sV, sO, sQ = 8, 12, 16, 20
    s_wave, s_head, s_vo, s_cnt = 3, 24, 25, 26
    s_out, s_dbg, s_ws = 28, 30, 32
    s_scale, s_c1, s_tmp, s_tmp2 = 34, 36, 38, 39
    s_t0, s_t1, s_ta, s_tc = 40, 42, 44, 46
    s_sh, s_have, s_pok = 48, 49, 50
    s_m0 = 52
    s_id = 54
    s_ko = 58
    s_wm = 60
    v_lane, v_vo, v_den, v_p0 = 0, 1, 2, 3
    v_nh, v_one, v_kc, v_tk = 4, 6, 7, 8
    v_prog, v_wa = 10, 9
    v_da, v_ra, v_dm, v_sel = 12, 16, 20, 24
    v_pq, v_c0, v_acc = 28, 36, 40
    v_ksq, v_w, v_D2, v_t = 44, 48, 52, 56
    v_P, v_D = 60, 68
    v_A = v_D
    v_w2 = 84
    v_ts = 88
    v_p1 = 90
    v_K = 92
    nv = v_K + 32
    acc_off = (nv + 3) // 4 * 4
    a_om, a_V = 0, 64
    total = acc_off + 64 + 16 * VD
    OM, RING, WT = 0, 16384, 16384 + 65536
    RED = WT + 16384
    CTR = RED + W * 512 + 32
    lds = CTR + 32

    A(f"s_cmp_ge_u32 s2, {NWG}")
    A("s_cbranch_scc1 L_done")
    A("s_load_dwordx8 s[4:11], s[0:1], 0")
    A(f"s_load_dwordx4 s[{s_out}:{s_out+3}], s[0:1], 32")
    A(f"s_load_dwordx2 s[{s_ws}:{s_ws+1}], s[0:1], 48")
    A(f"v_lshrrev_b32 v{v_t}, 6, v0")
    A(f"v_and_b32 v{v_lane}, 63, v0")
    A(f"v_readfirstlane_b32 s{s_wave}, v{v_t}")
    j, g = v_t + 1, v_t + 2
    A(f"v_and_b32 v{j}, 15, v{v_lane}")
    A(f"v_lshrrev_b32 v{g}, 4, v{v_lane}")
    A(f"v_lshlrev_b32 v{v_vo}, 10, v{g}")
    A(f"v_lshl_add_u32 v{v_vo}, v{j}, 4, v{v_vo}")
    A(f"v_lshlrev_b32 v{v_t+3}, 4, v{g}")
    if pm == 3:
        A(f"s_lshr_b32 s{s_tmp}, s2, 1")
        A(f"s_and_b32 s{s_tmp2}, s{s_tmp}, 1")
        A(f"s_xor_b32 s{s_tmp}, s{s_tmp}, s2")
        A(f"s_and_b32 s{s_tmp}, s{s_tmp}, 1")
        A(f"s_lshl_b32 s{s_tmp}, s{s_tmp}, 1")
        A(f"s_andn2_b32 s2, s2, 3")
        A(f"s_or_b32 s2, s2, s{s_tmp}")
        A(f"s_or_b32 s2, s2, s{s_tmp2}")
    A(f"s_lshr_b32 s{s_head}, s2, 1")
    A(f"s_lshl_b32 s{s_vo}, s{s_wave}, 12")
    A(f"s_lshl_b32 s{s_tmp2}, s2, 20")
    for i in range(4):
        A(f"v_add_u32 v{v_da+i}, {4*i}, v{g}")
        A(f"v_xor_b32 v{v_da+i}, v{v_da+i}, v{j}")
        A(f"v_lshlrev_b32 v{v_da+i}, 4, v{v_da+i}")
        A(f"v_lshl_add_u32 v{v_da+i}, v{g}, 8, v{v_da+i}")
    A(f"s_lshl_b32 s{s_m0}, s{s_wave}, 13")
    A(f"s_add_u32 s{s_m0}, s{s_m0}, {RING}")
    A(f"s_add_u32 s{s_m0+1}, s{s_m0}, 4096")
    if trace: A(f"s_memrealtime s[{s_t0}:{s_t0+1}]")
    A("s_waitcnt lgkmcnt(0)")
    if trace: A(f"v_writelane_b32 v{v_ts}, s{s_t0}, 32")
    A(f"""s_add_u32 s{sV}, s8, s{s_tmp2}
    s_addc_u32 s{sV+1}, s9, 0
    s_and_b32 s{sV+1}, s{sV+1}, 0xffff
    s_mov_b32 s{sV+2}, {NT*4096}
    s_mov_b32 s{sV+3}, 0x20000
    s_mov_b32 s{sO}, s10
    s_and_b32 s{sO+1}, s11, 0xffff
    s_mov_b32 s{sO+2}, 16384
    s_mov_b32 s{sO+3}, 0x20000
    s_add_u32 s{sK}, s6, s{s_tmp2}
    s_addc_u32 s{sK+1}, s7, 0
    s_and_b32 s{sK+1}, s{sK+1}, 0xffff
    s_mov_b32 s{sK+2}, {NT*4096}
    s_mov_b32 s{sK+3}, 0x20000
    s_mov_b32 s{sQ}, s4
    s_and_b32 s{sQ+1}, s5, 0xffff
    s_mov_b32 s{sQ+2}, 32768
    s_mov_b32 s{sQ+3}, 0x20000""")
    def dmaK(slot):
        return [f"s_mov_b32 m0, s{s_m0+slot}", "s_nop 0"] + \
               [f"buffer_load_dwordx4 v{v_da+i}, s[{sK}:{sK+3}], s{s_ko} offen offset:{1024*i} {flags} lds" for i in range(4)]
    def issueV(st):
        for r in range(4):
            A(f"buffer_load_dwordx4 {ar(a_V+16*st+4*r)}, v{v_vo}, s[{sV}:{sV+3}], s{s_vo} offen offset:{256*r} {flags}")
        A(f"s_add_u32 s{s_vo}, s{s_vo}, {W*4096}")
    A(f"s_cmp_lg_u32 s{s_wave}, {W-1}")
    A("s_cbranch_scc1 L_norst")
    for i in range(4): A(f"v_mov_b32 v{v_D+i}, 0")
    A(f"s_lshl_b32 s{s_tmp}, s2, 10")
    A(f"v_lshl_add_u32 v{v_D+4}, v{v_lane}, 4, s{s_tmp}")
    A(f"global_store_dwordx4 v{v_D+4}, {vr(v_D)}, s[{s_ws}:{s_ws+1}] sc0 sc1")
    A("L_norst:")
    A(f"s_cmp_ge_u32 s{s_wave}, 4")
    A("s_cbranch_scc1 L_noom")
    A(f"s_lshl_b32 s{s_tmp2}, s{s_wave}, 12")
    A(f"s_mov_b32 m0, s{s_tmp2}")
    A("s_nop 0")
    for i in range(4):
        A(f"buffer_load_dwordx4 v{v_da+i}, s[{sO}:{sO+3}], s{s_tmp2} offen offset:{1024*i} lds")
    A("L_noom:")
    qreg = v_pq
    A(f"s_lshl_b32 s{s_tmp}, s{s_head}, 8")
    for t in range(4):
        A(f"buffer_load_dwordx4 {vr(qreg+4*t)}, v{v_t+3}, s[{sQ}:{sQ+3}], s{s_tmp} offen offset:{64*t}")
    A(f"s_mov_b32 s{s_id}, s{s_wave}")
    A(f"s_add_u32 s{s_id+1}, s{s_wave}, {W}")
    for sl in range(2):
        A(f"s_lshl_b32 s{s_ko}, s{s_id+sl}, 12")
        for x in dmaK(sl): A(x)
    A(f"s_mov_b32 s{s_scale}, {hex(f2u(SCALE))}")
    A(f"s_mov_b32 s{s_scale+1}, {hex(f2u(SCALE))}")
    c1 = LOG2E if mimic else SCALE * LOG2E
    A(f"s_mov_b32 s{s_c1}, {hex(f2u(c1))}")
    A(f"s_mov_b32 s{s_c1+1}, {hex(f2u(c1))}")
    A(f"s_mov_b32 s{s_wm}, 0x00010001")
    A(f"s_mov_b32 s{s_wm+1}, 0x00010001")
    A(f"v_mov_b32 v{v_den}, 0")
    A(f"v_mov_b32 v{v_D}, 0x0c0c0302")
    A(f"v_mov_b32 v{v_D+1}, 0x03020c0c")
    for q in range(4):
        A(f"v_mov_b32 v{v_sel+q}, 0x0c0c0c0c")
        A(f"v_cmp_eq_u32 vcc, {2*q}, v{j}")
        A("s_nop 1")
        A(f"v_cndmask_b32 v{v_sel+q}, v{v_sel+q}, v{v_D}, vcc")
        A(f"v_cmp_eq_u32 vcc, {2*q+1}, v{j}")
        A("s_nop 1")
        A(f"v_cndmask_b32 v{v_sel+q}, v{v_sel+q}, v{v_D+1}, vcc")
    A(f"v_mov_b32 v{v_one}, 1.0")
    A(f"v_mov_b32 v{v_kc}, {hex(f2u(1.0 if mimic else -0.5*SCALE*SCALE*LOG2E))}")
    for r in range(4):
        A(f"v_lshl_add_u32 v{v_D+2}, v{g}, 2, {r}")
        A(f"v_cmp_eq_u32 vcc, v{v_D+2}, v{j}")
        A("s_nop 1")
        A(f"v_cndmask_b32 v{v_dm+r}, 0, v{v_one}, vcc")
    A(f"v_mov_b32 v{v_prog}, {CTR}")
    A(f"v_mov_b32 v{v_prog+1}, 1")
    A(f"v_lshlrev_b32 v{v_wa}, 4, v{g}")
    A(f"v_add_u32 v{v_wa}, {WT}, v{v_wa}")
    for t in range(4):
        A(f"v_add_u32 v{v_ra+t}, {4*t}, v{g}")
        A(f"v_xor_b32 v{v_ra+t}, v{v_ra+t}, v{j}")
        A(f"v_lshlrev_b32 v{v_ra+t}, 4, v{v_ra+t}")
        A(f"v_lshl_add_u32 v{v_ra+t}, v{j}, 8, v{v_ra+t}")
    A(f"s_cmp_lg_u32 s{s_wave}, 0")
    A("s_cbranch_scc1 L_nz")
    A(f"v_mov_b32 v{v_P}, 0")
    A(f"v_mov_b32 v{v_P+1}, 0")
    A(f"v_mov_b32 v{v_P+2}, {2*W}")
    A(f"v_mov_b32 v{v_P+3}, 0")
    A(f"ds_write_b128 v{v_prog}, {vr(v_P)}")
    A("L_nz:")
    A("s_waitcnt vmcnt(8) lgkmcnt(0)")
    A("s_barrier")
    A(f"s_cmp_lg_u32 s{s_wave}, {W-1}")
    A("s_cbranch_scc1 L_noann")
    A(f"s_and_b32 s{s_tmp}, s2, 31")
    A(f"s_lshl_b32 s{s_tmp}, 1, s{s_tmp}")
    A(f"s_lshr_b32 s{s_tmp2}, s2, 5")
    A(f"s_lshl_b32 s{s_tmp2}, s{s_tmp2}, 5")
    A(f"v_mov_b32 v{v_D}, s{s_tmp}")
    A(f"v_mov_b32 v{v_D+1}, s{s_tmp2}")
    A("s_mov_b64 exec, 1")
    A(f"global_atomic_or v{v_D+1}, v{v_D}, s[{s_dbg}:{s_dbg+1}]")
    A("s_mov_b64 exec, -1")
    A("L_noann:")
    for mt in range(4):
        for t in range(4):
            A(f"ds_read_b128 {ar(a_om+16*mt+4*t)}, v{v_ra+t} offset:{4096*mt}")
    for t in range(4): A(f"v_add_u32 v{v_ra+t}, s{s_m0}, v{v_ra+t}")
    def ticket():
        return ["s_mov_b64 exec, 1", f"ds_add_rtn_u32 v{v_tk}, v{v_prog}, v{v_prog+1} offset:8", "s_mov_b64 exec, -1"]
    def rdK(slot, kb):
        return [f"ds_read_b128 {vr(kb+4*t)}, v{v_ra+t} offset:{4096*slot}" for t in range(4)]
    A("s_waitcnt vmcnt(4)")
    for x in rdK(0, v_K) + ticket(): A(x)

    def scale_list(base):
        L = []
        for i in (0, 2):
            x, y = base + i, base + i + 1
            t, u = v_t, v_t + 2
            L += [f"v_lshlrev_b32 v{t}, 16, v{x}", f"v_and_b32 v{t+1}, 0xffff0000, v{x}",
                  f"v_lshlrev_b32 v{u}, 16, v{y}", f"v_and_b32 v{u+1}, 0xffff0000, v{y}"]
            if pk:
                L += [f"v_pk_mul_f32 {vr(t,2)}, {vr(t,2)}, s[{s_scale}:{s_scale+1}]",
                      f"v_pk_mul_f32 {vr(u,2)}, {vr(u,2)}, s[{s_scale}:{s_scale+1}]"]
            else:
                L += [f"v_mul_f32 v{r}, s{s_scale}, v{r}" for r in (t, t+1, u, u+1)]
            L += [f"v_cvt_pk_bf16_f32 v{x}, v{t}, v{t+1}", f"v_cvt_pk_bf16_f32 v{y}, v{u}, v{u+1}"]
        return L
    def Ms(kb, t):
        c = lambda d: "0" if t == 0 else vr(d)
        L = [] if dot else [f"v_mfma_f32_16x16x32_bf16 {vr(v_D2)}, {vr(kb+4*t)}, {vr(kb+4*t)}, {c(v_D2)}"]
        return L + [f"v_mfma_f32_16x16x32_bf16 {vr(v_D+4*mt)}, {ar(a_om+16*mt+4*t)}, {vr(kb+4*t)}, {c(v_D+4*mt)}" for mt in range(4)]
    def kfront(kb, do_scale, kc, mid):
        S = [scale_list(kb + 4 * t) if do_scale else [] for t in range(4)]
        if do_scale and ilv:
            for x in S[0] + mid: A(x)
            for t in range(1, 4):
                M, L = Ms(kb, t - 1), S[t]
                for x in L[:2]: A(x)
                L = L[2:]
                n, m = len(L), len(M)
                for k in range(m):
                    A(M[k])
                    for x in L[k * n // m:(k + 1) * n // m]: A(x)
            if dot:
                for x in dots(kb): A(x)
            else:
                A("s_nop 1")
            for x in Ms(kb, 3): A(x)
        else:
            for x in S[0] + mid + S[1] + S[2] + S[3]: A(x)
            if dot:
                for x in dots(kb): A(x)
            else:
                A("s_nop 1")
            for t in range(4):
                for x in Ms(kb, t): A(x)
        if dot:
            A(f"v_add_f32 v{v_p0}, v{v_p0}, v{v_p1}")
        else:
            A("s_nop 3")
            A(f"v_mul_f32 v{v_p0}, v{v_dm}, v{v_D2}")
            for r in range(1, 4): A(f"v_fmac_f32 v{v_p0}, v{v_dm+r}, v{v_D2+r}")
        A("s_nop 1")
        A(f"v_mfma_f32_16x16x4_f32 {vr(v_ksq)}, v{kc}, v{v_p0}, 0")
    def dots(kb):
        L = []
        for i in range(16):
            p = v_p0 if i % 2 == 0 else v_p1
            L.append(f"v_dot2_f32_bf16 v{p}, v{kb+i}, v{kb+i}, {'0' if i < 2 else 'v%d' % p}")
        return L

    kfront(qreg, True, v_one, ["s_waitcnt lgkmcnt(0)", f"v_readfirstlane_b32 s{s_id+2}, v{v_tk}",
                               f"s_lshl_b32 s{s_ko}, s{s_id+2}, 12"] + dmaK(0))
    xs = [v_D + i for i in range(16)]
    for x in xs: A(f"v_cvt_pk_bf16_f32 v{x}, 0, v{x}")
    A(f"v_cvt_pk_bf16_f32 v{v_nh}, 0, v{v_ksq}")
    A(f"v_mul_f32 v{v_nh}, -0.5, v{v_nh}")
    A(f"s_mov_b32 s{s_tmp}, {hex(f2u(LOG2E))}")
    A(f"s_mov_b32 s{s_tmp2}, {hex(f2u(1e-6))}")
    for x in xs: A(f"v_add_f32 v{x}, v{x}, v{v_nh}")
    for x in xs: A(f"v_cvt_pk_bf16_f32 v{x}, 0, v{x}")
    for x in xs: A(f"v_mul_f32 v{x}, s{s_tmp}, v{x}")
    for x in xs: A(f"v_exp_f32 v{x}, v{x}")
    for x in xs: A(f"v_cvt_pk_bf16_f32 v{x}, 0, v{x}")
    for x in xs: A(f"v_mul_f32 v{x}, 0x3e000000, v{x}")
    for x in xs: A(f"v_add_f32 v{x}, s{s_tmp2}, v{x}")
    for x in xs: A(f"v_cvt_pk_bf16_f32 v{x}, 0, v{x}")
    A(f"v_add_f32 v{v_p0}, v{xs[0]}, v{xs[1]}")
    for x in xs[2:]: A(f"v_add_f32 v{v_p0}, v{v_p0}, v{x}")
    for x in xs: A(f"v_mul_f32 v{x}, 0x3e000000, v{x}")
    A(f"v_mul_f32 v{v_p0}, s{s_tmp2}, v{v_p0}")
    for i in range(8): A(f"v_cvt_pk_bf16_f32 v{v_pq+i}, v{xs[2*i]}, v{xs[2*i+1]}")
    A(f"v_mfma_f32_16x16x4_f32 {vr(v_c0)}, v{v_one}, v{v_p0}, 0")
    for r in range(4): A(f"v_mov_b32 v{v_acc+r}, 0")
    if trace:
        A(f"s_memrealtime s[{s_t0}:{s_t0+1}]\ns_waitcnt lgkmcnt(0)\nv_writelane_b32 v{v_ts}, s{s_t0}, 34\ns_mov_b32 s{s_cnt}, 0")

    def kphase(p):
        kb, kn = v_K + 16 * p, v_K + 16 * (1 - p)
        A(f"s_cmp_ge_u32 s{s_id}, {NT}")
        A("s_cbranch_scc1 L_kdone")
        A("s_waitcnt vmcnt(4)")
        pre = rdK(1 - p, kn) + ticket()
        for x in pre: A(x)
        mid = ["s_waitcnt lgkmcnt(0)", f"v_readfirstlane_b32 s{s_id+3}, v{v_tk}",
               f"s_lshl_b32 s{s_tmp}, s{s_id}, 6", f"s_min_u32 s{s_id+3}, s{s_id+3}, {NT}",
               f"s_lshl_b32 s{s_ko}, s{s_id+3}, 12"] + dmaK(1 - p)
        kfront(kb, mimic, v_kc, mid)
        if mimic:
            for x in xs: A(f"v_cvt_pk_bf16_f32 v{x}, 0, v{x}")
            A(f"v_cvt_pk_bf16_f32 v{v_nh}, 0, v{v_ksq}")
            A(f"v_mul_f32 v{v_nh}, -0.5, v{v_nh}")
        else:
            A("s_nop 7\ns_nop 1")
        for h in range(2):
            ys = xs[8 * h:8 * h + 8]
            if mimic:
                if pk:
                    for i in range(0, 8, 2): A(f"v_pk_add_f32 {vr(ys[i],2)}, {vr(ys[i],2)}, {vr(v_nh,2)} op_sel_hi:[1,0]")
                else:
                    for x in ys: A(f"v_add_f32 v{x}, v{x}, v{v_nh}")
                for x in ys: A(f"v_cvt_pk_bf16_f32 v{x}, 0, v{x}")
                if pk:
                    for i in range(0, 8, 2): A(f"v_pk_mul_f32 {vr(ys[i],2)}, {vr(ys[i],2)}, s[{s_c1}:{s_c1+1}]")
                else:
                    for x in ys: A(f"v_mul_f32 v{x}, s{s_c1}, v{x}")
            else:
                for x in ys: A(f"v_fma_f32 v{x}, v{x}, s{s_c1}, v{v_ksq}")
            for x in ys: A(f"v_exp_f32 v{x}, v{x}")
            for i in range(4): A(f"v_cvt_pk_bf16_f32 v{v_P+4*h+i}, v{ys[2*i]}, v{ys[2*i+1]}")
        A(f"v_mfma_f32_16x16x32_bf16 {vr(v_w)}, {vr(v_P)}, {vr(v_pq)}, {vr(v_c0)}")
        A(f"v_add_u32 v{v_t}, s{s_tmp}, v{v_wa}")
        A(f"v_mfma_f32_16x16x32_bf16 {vr(v_w)}, {vr(v_P+4)}, {vr(v_pq+4)}, {vr(v_w)}")
        A(f"s_mov_b32 s{s_id}, s{s_id+1}")
        A(f"s_mov_b32 s{s_id+1}, s{s_id+2}")
        A(f"s_mov_b32 s{s_id+2}, s{s_id+3}")
        if trace:
            A(f"s_add_u32 s{s_cnt}, s{s_cnt}, 1")
            A("s_nop 3")
        else:
            A("s_nop 4")
        for r in range(4): A(f"v_cvt_pk_bf16_f32 v{v_w+r}, 0, v{v_w+r}")
        A(f"s_mov_b64 exec, s[{s_wm}:{s_wm+1}]")
        A(f"ds_write_b128 v{v_t}, {vr(v_w)}")
        A("s_mov_b64 exec, -1")
        for r in range(4): A(f"v_add_f32 v{v_den}, v{v_den}, v{v_w+r}")
    A(".p2align 6")
    A("L_kloop:")
    kphase(0); kphase(1)
    A("s_branch L_kloop")
    A("L_kdone:")
    if trace:
        A(f"s_memrealtime s[{s_t0}:{s_t0+1}]\ns_waitcnt lgkmcnt(0)\nv_writelane_b32 v{v_ts}, s{s_t0}, 33\nv_writelane_b32 v{v_ts}, s{s_cnt}, 36")
    for st in range(VD): issueV(st)
    A(f"s_lshl_b32 s{s_tmp}, s{s_wave}, 6")
    A(f"v_add_u32 v{v_wa}, s{s_tmp}, v{v_wa}")
    A("s_waitcnt lgkmcnt(0)")
    A("s_barrier")
    wb = [v_w, v_w2]
    A(f"ds_read_b128 {vr(wb[0])}, v{v_wa}")
    NV = NT // W
    U = VD if VD % 2 == 0 else 2 * VD
    assert NV % U == 0
    def vtile(k, last_group, idx):
        st = k % VD
        w, wn = wb[k % 2], wb[(k + 1) % 2]
        A("s_waitcnt lgkmcnt(0)")
        A(f"ds_read_b128 {vr(wn)}, v{v_wa} offset:{512*(k+1)}")
        for r in range(4):
            for q in range(4):
                A(f"v_perm_b32 v{v_A+4*r+q}, v{w+r}, v{w+r}, v{v_sel+q}")
        rem = U - 1 - k
        wait = 4 * min(VD - 1, rem) if last_group else 4 * (VD - 1)
        A(f"s_waitcnt vmcnt({wait})")
        for r in range(4):
            A(f"v_mfma_f32_16x16x32_bf16 {vr(v_acc)}, {vr(v_A+4*r)}, {ar(a_V+16*st+4*r)}, {vr(v_acc)}")
        if not last_group or rem >= VD: issueV(st)
    A(f"s_mov_b32 s{s_cnt}, {NV // U - 1}")
    A(".p2align 6")
    A("L_vloop:")
    for k in range(U): vtile(k, False, k)
    A(f"v_add_u32 v{v_wa}, {512*U}, v{v_wa}")
    A("s_mov_b64 exec, 1")
    A(f"ds_add_u32 v{v_prog}, v{v_prog+1}")
    A("s_mov_b64 exec, -1")
    if trace:
        A(f"s_memrealtime s[{s_t0}:{s_t0+1}]\ns_waitcnt lgkmcnt(0)\ns_mov_b32 m0, s{s_cnt}\ns_nop 0\nv_writelane_b32 v{v_ts}, s{s_t0}, m0")
    A(f"s_sub_u32 s{s_cnt}, s{s_cnt}, 1")
    A(f"s_cmp_lg_u32 s{s_cnt}, 0")
    A("s_cbranch_scc1 L_vloop")
    for k in range(U): vtile(k, True, k)
    ntrip_total = NV // U - 1

    if trace:
        A(f"s_memrealtime s[{s_tc}:{s_tc+1}]")
        A("s_waitcnt lgkmcnt(0)")
        A(f"v_writelane_b32 v{v_ts}, s{s_tc}, 35")
        A(f"s_mul_i32 s{s_tmp}, s2, {W}\ns_add_u32 s{s_tmp}, s{s_tmp}, s{s_wave}\ns_lshl_b32 s{s_tmp}, s{s_tmp}, 8")
        A(f"s_add_u32 s{s_tmp}, s{s_tmp}, {0x100000 + sbase}")
        A(f"v_lshl_add_u32 v{v_ts+1}, v{v_lane}, 2, s{s_tmp}")
        A(f"global_store_dword v{v_ts+1}, v{v_ts}, s[{s_ws}:{s_ws+1}]")
    A(f"v_mfma_f32_16x16x4_f32 {vr(v_ksq)}, v{v_one}, v{v_den}, 0")
    A(f"v_and_b32 v{v_t+1}, 15, v{v_lane}")
    A(f"v_lshrrev_b32 v{v_t+2}, 4, v{v_lane}")
    A(f"v_lshlrev_b32 v{v_t}, 5, v{v_t+1}")
    A(f"v_lshl_add_u32 v{v_t}, v{v_t+2}, 4, v{v_t}")
    A(f"s_lshl_b32 s{s_tmp}, s{s_wave}, 9")
    A(f"s_add_u32 s{s_tmp}, s{s_tmp}, {RED}")
    A(f"v_add_u32 v{v_t}, s{s_tmp}, v{v_t}")
    A(f"s_lshl_b32 s{s_tmp}, s{s_wave}, 2")
    A(f"s_add_u32 s{s_tmp}, s{s_tmp}, {RED+W*512}")
    A(f"v_mov_b32 v{v_t+3}, s{s_tmp}")
    A(f"s_mov_b32 exec_hi, 0")
    A(f"ds_write_b128 v{v_t}, {vr(v_acc)}")
    A(f"s_mov_b64 exec, 1")
    A(f"ds_write_b32 v{v_t+3}, v{v_ksq}")
    A(f"ds_add_u32 v{v_prog}, v{v_prog+1} offset:4")
    A(f"s_mov_b64 exec, -1")
    A(f"s_cmp_lg_u32 s{s_wave}, 0")
    A("s_cbranch_scc1 L_done")
    n0, n1, dn = v_D, v_D + 1, v_D + 2
    pn, pd = v_D + 4, v_D + 6
    A(f"v_lshlrev_b32 v{v_t}, 3, v{v_lane}")
    A(f"v_add_u32 v{v_t}, {RED}, v{v_t}")
    A(f"s_lshl_b32 s{s_tmp}, s2, 10")
    A(f"v_lshl_add_u32 v{v_t+1}, v{v_lane}, 4, s{s_tmp}")
    A(f"v_xor_b32 v{v_p0}, 1024, v{v_t+1}")
    A(f"s_lshr_b32 s{s_tmp2}, s2, 5")
    A(f"s_lshl_b32 s{s_tmp2}, s{s_tmp2}, 5")
    A(f"v_mov_b32 v{v_t+3}, s{s_tmp2}")
    A(f"s_xor_b32 s{s_sh}, s2, 1")
    A(f"s_and_b32 s{s_sh}, s{s_sh}, 31")
    A(f"s_mov_b32 s{s_have}, 0")
    A(f"v_mov_b32 v{v_P+4}, {RED+W*512}")
    A(f"v_mov_b32 v{v_D+3}, 1")
    A(f"s_lshl_b32 s{s_tmp}, s{s_head}, 8")
    A(f"v_lshl_add_u32 v{v_t+2}, v{v_lane}, 2, s{s_tmp}")
    def read_pok():
        A(f"global_load_dword v{v_P+2}, v{v_t+3}, s[{s_dbg}:{s_dbg+1}] sc0 sc1")
        A("s_waitcnt vmcnt(0)")
        A(f"v_readfirstlane_b32 s{s_pok}, v{v_P+2}")
        A(f"s_lshr_b32 s{s_pok}, s{s_pok}, s{s_sh}")
        A(f"s_and_b32 s{s_pok}, s{s_pok}, 1")
    def fetch_partner():
        A(f"global_load_dwordx4 {vr(pn)}, v{v_p0}, s[{s_ws}:{s_ws+1}] sc0 sc1")
        A("s_waitcnt vmcnt(0)")
        A(f"v_cmp_eq_u32 vcc, 1, v{pn+3}")
        A("s_nop 1")
        A("s_cmp_eq_u64 vcc, -1")
        A(f"s_cselect_b32 s{s_have}, 1, 0")
    read_pok()
    thr = W * ntrip_total - pollwin
    A("L_wait:")
    A(f"ds_read_b64 {vr(v_P,2)}, v{v_prog}")
    A("s_waitcnt lgkmcnt(0)")
    A(f"v_readfirstlane_b32 s{s_tmp}, v{v_P+1}")
    A(f"v_readfirstlane_b32 s{s_tmp2}, v{v_P}")
    A(f"s_cmp_ge_u32 s{s_tmp}, {W}")
    A("s_cbranch_scc1 L_all")
    A(f"s_cmp_lt_u32 s{s_tmp2}, {thr}")
    A("s_cbranch_scc1 L_longnap")
    A(f"s_cmp_gt_u32 s{s_pok}, s{s_have}")
    A("s_cbranch_scc0 L_nap")
    fetch_partner()
    A("s_branch L_wait")
    A("L_longnap:")
    A("s_sleep 8")
    A("L_nap:")
    A(f"s_sleep {nap}")
    A("s_branch L_wait")
    A("L_all:")
    for w in range(W): A(f"ds_read_b64 {vr(v_K+2*w,2)}, v{v_t} offset:{512*w}")
    for h in range(2): A(f"ds_read_b128 {vr(v_K+16+4*h)}, v{v_P+4} offset:{16*h}")
    A("s_waitcnt lgkmcnt(0)")
    A(f"v_add_f32 v{n0}, v{v_K}, v{v_K+2}")
    A(f"v_add_f32 v{n1}, v{v_K+1}, v{v_K+3}")
    A(f"v_add_f32 v{dn}, v{v_K+16}, v{v_K+17}")
    for w in range(2, W):
        A(f"v_add_f32 v{n0}, v{n0}, v{v_K+2*w}")
        A(f"v_add_f32 v{n1}, v{n1}, v{v_K+2*w+1}")
        A(f"v_add_f32 v{dn}, v{dn}, v{v_K+16+w}")
    A(f"s_cmp_lg_u32 s{s_have}, 0")
    A("s_cbranch_scc1 L_comb")
    A(f"global_store_dwordx4 v{v_t+1}, {vr(n0)}, s[{s_ws}:{s_ws+1}] sc0 sc1")
    A("s_waitcnt vmcnt(0)")
    A(f"s_cmp_lg_u32 s{s_pok}, 0")
    A("s_cbranch_scc1 L_look")
    read_pok()
    A(f"s_cmp_eq_u32 s{s_pok}, 0")
    A("s_cbranch_scc1 L_done")
    A("L_look:")
    fetch_partner()
    A("s_cbranch_scc0 L_done")
    A("L_comb:")
    A(f"v_add_f32 v{dn}, v{dn}, v{pd}")
    A(f"v_add_f32 v{n0}, v{n0}, v{pn}")
    A(f"v_add_f32 v{dn}, {hex(f2u(1e-6))}, v{dn}")
    A(f"v_add_f32 v{n1}, v{n1}, v{pn+1}")
    R = [[v_K + 8 * i + k for k in range(5)] for i in range(2)]
    sv = [f"s[{s_t0}:{s_t0+1}]", f"s[{s_t1}:{s_t1+1}]"]
    for i in range(2): A(f"v_div_scale_f32 v{R[i][0]}, s[{s_ta}:{s_ta+1}], v{dn}, v{dn}, v{n0+i}")
    for i in range(2): A(f"v_rcp_f32 v{R[i][1]}, v{R[i][0]}")
    for i in range(2): A(f"v_div_scale_f32 v{R[i][2]}, {sv[i]}, v{n0+i}, v{dn}, v{n0+i}")
    for i in range(2): a, b, c, d, e = R[i]; A(f"v_fma_f32 v{d}, -v{a}, v{b}, 1.0")
    for i in range(2): a, b, c, d, e = R[i]; A(f"v_fma_f32 v{b}, v{d}, v{b}, v{b}")
    for i in range(2): a, b, c, d, e = R[i]; A(f"v_mul_f32 v{d}, v{c}, v{b}")
    for i in range(2): a, b, c, d, e = R[i]; A(f"v_fma_f32 v{e}, -v{a}, v{d}, v{c}")
    for i in range(2): a, b, c, d, e = R[i]; A(f"v_fma_f32 v{d}, v{e}, v{b}, v{d}")
    for i in range(2): a, b, c, d, e = R[i]; A(f"v_fma_f32 v{a}, -v{a}, v{d}, v{c}")
    for i in range(2):
        a, b, c, d, e = R[i]
        A(f"s_mov_b64 vcc, {sv[i]}")
        A("s_nop 3")
        A(f"v_div_fmas_f32 v{a}, v{a}, v{b}, v{d}")
        A(f"v_div_fixup_f32 v{n0+i}, v{a}, v{dn}, v{n0+i}")
    A(f"v_cvt_pk_bf16_f32 v{n0}, v{n0}, v{n1}")
    A(f"global_store_dword v{v_t+2}, v{n0}, s[{s_out}:{s_out+1}]")
    A("L_done:")
    A("s_endpgm")
    if noload:
        first = next(i for i, l in enumerate(A.L) if l.startswith("L_kloop"))
        A.L = [("    s_nop 0" if (i > first and "buffer_load_dwordx4" in l) else l) for i, l in enumerate(A.L)]
    out = HEADER + f"; @launch grid=({NWG},1,1) block=({W*64},1,1) lds={lds}\n"
    out += f'.amdgcn_target "amdgcn-amd-amdhsa--gfx950"\n.text\n.globl {name}\n.p2align 8\n.type {name},@function\n{name}:\n'
    out += A.text()
    out += f""".section .rodata,"a"
.p2align 6
.amdhsa_kernel {name}
  .amdhsa_next_free_vgpr {total}
  .amdhsa_next_free_sgpr 64
  .amdhsa_accum_offset {acc_off}
  .amdhsa_group_segment_fixed_size 0
  .amdhsa_kernarg_size 56
  .amdhsa_user_sgpr_count 2
  .amdhsa_user_sgpr_kernarg_segment_ptr 1
  .amdhsa_system_sgpr_workgroup_id_x 1
  .amdhsa_float_denorm_mode_32 3
.end_amdhsa_kernel
"""
    if meta: out += META.format(name=name, vgpr=total, wg=W*64)
    return out, f"{NWG}:{W*64}:{lds}", total

if __name__ == "__main__":
    if sys.argv[1] == "final":
        kw = eval("dict(" + (sys.argv[3] if len(sys.argv) > 3 else "") + ")")
        t, g, tot = gen(**kw)
        open(sys.argv[2], "w").write(t)
        print(g, "regs", tot)
    else:
        specs = []
        for c in eval(open(sys.argv[1]).read()):
            t, g, tot = gen(meta=True, **c)
            n = c["name"]
            open(n + ".s", "w").write(t)
            subprocess.check_call(["clang", "-x", "assembler", "-target", "amdgcn-amd-amdhsa", "-mcpu=gfx950", n + ".s", "-o", n + ".co"])
            specs.append(f"{n}.co:{n}:{g}")
            print(n, "regs", tot, file=sys.stderr)
        open("specs3.txt", "w").write(" ".join(specs))
```

```python
import sys, subprocess
from gen import HEADER, META, G, vr, ar, f2u, SCALE, LOG2E

def gen(name="standalone__linear_kernel_rfa__decode_kernel", mimic=True, pk=False, flags="nt", meta=False,
        pm=3, pollwin=6, VD=2, ilv=True, trace=False, sbase=0, noload=False, nap=1, dot=False, ybar=True, vperm='id', KD=2, late=0, VP=0, share=False, pk2=False, VT=0):
    W, NWG, NT = 8, 256, 256
    A = G()
    sK, sV, sO, sQ = 8, 12, 16, 20
    s_wave, s_head, s_vo, s_cnt = 3, 24, 25, 26
    s_out, s_dbg, s_ws = 28, 30, 32
    s_scale, s_c1, s_tmp, s_tmp2 = 34, 36, 38, 39
    s_t0, s_t1, s_ta, s_tc = 40, 42, 44, 46
    s_sh, s_have, s_pok = 48, 49, 50
    s_m0 = 52
    s_id = 54
    s_ko = 58
    s_wm = 60
    v_lane, v_vo, v_den, v_p0 = 0, 1, 2, 3
    v_nh, v_one, v_kc, v_tk = 4, 6, 7, 8
    v_prog, v_wa = 10, 9
    v_da, v_ra, v_dm, v_sel = 12, 16, 20, 24
    v_pq, v_c0, v_acc = 28, 36, 40
    v_ksq, v_w, v_D2, v_t = 44, 48, 52, 56
    v_P, v_D = 60, 68
    v_A = v_D
    v_w2 = 84
    v_ts = 88
    v_p1 = 90
    v_K = 92
    nv = v_K + 32
    acc_off = (nv + 3) // 4 * 4
    a_om, a_V = 0, 64
    NVB = max(VD, VP + VT)
    s_nv = 62
    total = acc_off + 64 + 16 * NVB
    assert total <= 256
    OM, RING, WT = 0, 16384, 16384 + 65536
    RED = WT + 16384
    CTR = RED + W * 512 + 32
    PQ = CTR + 32
    lds = PQ + 160

    A(f"s_cmp_ge_u32 s2, {NWG}")
    A("s_cbranch_scc1 L_done")
    A("s_load_dwordx8 s[4:11], s[0:1], 0")
    A(f"s_load_dwordx4 s[{s_out}:{s_out+3}], s[0:1], 32")
    A(f"s_load_dwordx2 s[{s_ws}:{s_ws+1}], s[0:1], 48")
    A(f"v_lshrrev_b32 v{v_t}, 6, v0")
    A(f"v_and_b32 v{v_lane}, 63, v0")
    A(f"v_readfirstlane_b32 s{s_wave}, v{v_t}")
    j, g = v_t + 1, v_t + 2
    A(f"v_and_b32 v{j}, 15, v{v_lane}")
    A(f"v_lshrrev_b32 v{g}, 4, v{v_lane}")
    def chunk_of(dst, src, tmp):
        if vperm == 'id':
            A(f"v_mov_b32 v{dst}, v{src}")
        else:
            k = {'t4': 2, 't2': 1, 't8': 3}[vperm]
            A(f"v_and_b32 v{tmp}, {(1<<k)-1}, v{src}")
            A(f"v_lshlrev_b32 v{tmp}, {4-k}, v{tmp}")
            A(f"v_lshrrev_b32 v{dst}, {k}, v{src}")
            A(f"v_or_b32 v{dst}, v{dst}, v{tmp}")
    chunk_of(v_D, j, v_D + 1)
    A(f"v_lshlrev_b32 v{v_vo}, 10, v{g}")
    A(f"v_lshl_add_u32 v{v_vo}, v{v_D}, 4, v{v_vo}")
    A(f"v_lshlrev_b32 v{v_t+3}, 4, v{g}")
    if pm == 3:
        A(f"s_lshr_b32 s{s_tmp}, s2, 1")
        A(f"s_and_b32 s{s_tmp2}, s{s_tmp}, 1")
        A(f"s_xor_b32 s{s_tmp}, s{s_tmp}, s2")
        A(f"s_and_b32 s{s_tmp}, s{s_tmp}, 1")
        A(f"s_lshl_b32 s{s_tmp}, s{s_tmp}, 1")
        A(f"s_andn2_b32 s2, s2, 3")
        A(f"s_or_b32 s2, s2, s{s_tmp}")
        A(f"s_or_b32 s2, s2, s{s_tmp2}")
    A(f"s_lshr_b32 s{s_head}, s2, 1")
    A(f"s_lshl_b32 s{s_vo}, s{s_wave}, 12")
    A(f"s_lshl_b32 s{s_tmp2}, s2, 20")
    for i in range(4):
        A(f"v_add_u32 v{v_da+i}, {4*i}, v{g}")
        A(f"v_xor_b32 v{v_da+i}, v{v_da+i}, v{j}")
        A(f"v_lshlrev_b32 v{v_da+i}, 4, v{v_da+i}")
        A(f"v_lshl_add_u32 v{v_da+i}, v{g}, 8, v{v_da+i}")
    A(f"s_lshl_b32 s{s_m0}, s{s_wave}, 13")
    A(f"s_add_u32 s{s_m0}, s{s_m0}, {RING}")
    A(f"s_add_u32 s{s_m0+1}, s{s_m0}, 4096")
    if trace: A(f"s_memrealtime s[{s_t0}:{s_t0+1}]")
    A("s_waitcnt lgkmcnt(0)")
    if trace: A(f"v_writelane_b32 v{v_ts}, s{s_t0}, 32")
    A(f"""s_add_u32 s{sV}, s8, s{s_tmp2}
    s_addc_u32 s{sV+1}, s9, 0
    s_and_b32 s{sV+1}, s{sV+1}, 0xffff
    s_mov_b32 s{sV+2}, {NT*4096}
    s_mov_b32 s{sV+3}, 0x20000
    s_mov_b32 s{sO}, s10
    s_and_b32 s{sO+1}, s11, 0xffff
    s_mov_b32 s{sO+2}, 16384
    s_mov_b32 s{sO+3}, 0x20000
    s_add_u32 s{sK}, s6, s{s_tmp2}
    s_addc_u32 s{sK+1}, s7, 0
    s_and_b32 s{sK+1}, s{sK+1}, 0xffff
    s_mov_b32 s{sK+2}, {NT*4096}
    s_mov_b32 s{sK+3}, 0x20000
    s_mov_b32 s{sQ}, s4
    s_and_b32 s{sQ+1}, s5, 0xffff
    s_mov_b32 s{sQ+2}, 32768
    s_mov_b32 s{sQ+3}, 0x20000""")
    def dmaK(slot):
        return [f"s_mov_b32 m0, s{s_m0+slot}", "s_nop 0"] + \
               [f"buffer_load_dwordx4 v{v_da+i}, s[{sK}:{sK+3}], s{s_ko} offen offset:{1024*i} {flags} lds" for i in range(4)]
    def issueV(st):
        for r in range(4):
            A(f"buffer_load_dwordx4 {ar(a_V+16*st+4*r)}, v{v_vo}, s[{sV}:{sV+3}], s{s_vo} offen offset:{256*r} {flags}")
        A(f"s_add_u32 s{s_vo}, s{s_vo}, {W*4096}")
    A(f"s_cmp_lg_u32 s{s_wave}, {W-1}")
    A("s_cbranch_scc1 L_norst")
    for i in range(4): A(f"v_mov_b32 v{v_D+i}, 0")
    A(f"s_lshl_b32 s{s_tmp}, s2, 10")
    A(f"v_lshl_add_u32 v{v_D+4}, v{v_lane}, 4, s{s_tmp}")
    A(f"global_store_dwordx4 v{v_D+4}, {vr(v_D)}, s[{s_ws}:{s_ws+1}] sc0 sc1")
    A("L_norst:")
    A(f"s_cmp_ge_u32 s{s_wave}, 4")
    A("s_cbranch_scc1 L_noom")
    A(f"s_lshl_b32 s{s_tmp2}, s{s_wave}, 12")
    A(f"s_mov_b32 m0, s{s_tmp2}")
    A("s_nop 0")
    for i in range(4):
        A(f"buffer_load_dwordx4 v{v_da+i}, s[{sO}:{sO+3}], s{s_tmp2} offen offset:{1024*i} lds")
    if not share: A("L_noom:")
    qreg = v_pq
    A(f"s_lshl_b32 s{s_tmp}, s{s_head}, 8")
    for t in range(4):
        A(f"buffer_load_dwordx4 {vr(qreg+4*t)}, v{v_t+3}, s[{sQ}:{sQ+3}], s{s_tmp} offen offset:{64*t}")
    if share: A("L_noom:")
    A(f"s_mov_b32 s{s_id}, s{s_wave}")
    A(f"s_add_u32 s{s_id+1}, s{s_wave}, {W}")
    for sl in range(2):
        A(f"s_lshl_b32 s{s_ko}, s{s_id+sl}, 12")
        for x in dmaK(sl): A(x)
    if VP:
        A(f"s_cmp_ge_u32 s{s_wave}, 4")
        A("s_cbranch_scc1 L_novp")
        for st in range(VP): issueV(st)
        A("L_novp:")
    NI = 3 if KD == 2 else 2
    A(f"s_mov_b32 s{s_scale}, {hex(f2u(SCALE))}")
    A(f"s_mov_b32 s{s_scale+1}, {hex(f2u(SCALE))}")
    c1 = LOG2E if mimic else SCALE * LOG2E
    A(f"s_mov_b32 s{s_c1}, {hex(f2u(c1))}")
    A(f"s_mov_b32 s{s_c1+1}, {hex(f2u(c1))}")
    A(f"s_mov_b32 s{s_wm}, 0x00010001")
    A(f"s_mov_b32 s{s_wm+1}, 0x00010001")
    A(f"v_mov_b32 v{v_den}, 0")
    A(f"v_mov_b32 v{v_D}, 0x0c0c0302")
    A(f"v_mov_b32 v{v_D+1}, 0x03020c0c")
    for q in range(4):
        A(f"v_mov_b32 v{v_sel+q}, 0x0c0c0c0c")
        A(f"v_cmp_eq_u32 vcc, {2*q}, v{j}")
        A("s_nop 1")
        A(f"v_cndmask_b32 v{v_sel+q}, v{v_sel+q}, v{v_D}, vcc")
        A(f"v_cmp_eq_u32 vcc, {2*q+1}, v{j}")
        A("s_nop 1")
        A(f"v_cndmask_b32 v{v_sel+q}, v{v_sel+q}, v{v_D+1}, vcc")
    A(f"v_mov_b32 v{v_one}, 1.0")
    A(f"v_mov_b32 v{v_kc}, {hex(f2u(1.0 if mimic else -0.5*SCALE*SCALE*LOG2E))}")
    for r in range(4):
        A(f"v_lshl_add_u32 v{v_D+2}, v{g}, 2, {r}")
        A(f"v_cmp_eq_u32 vcc, v{v_D+2}, v{j}")
        A("s_nop 1")
        A(f"v_cndmask_b32 v{v_dm+r}, 0, v{v_one}, vcc")
    A(f"v_mov_b32 v{v_prog}, {CTR}")
    A(f"v_mov_b32 v{v_prog+1}, 1")
    A(f"v_lshlrev_b32 v{v_wa}, 4, v{g}")
    A(f"v_add_u32 v{v_wa}, {WT}, v{v_wa}")
    for t in range(4):
        A(f"v_add_u32 v{v_ra+t}, {4*t}, v{g}")
        A(f"v_xor_b32 v{v_ra+t}, v{v_ra+t}, v{j}")
        A(f"v_lshlrev_b32 v{v_ra+t}, 4, v{v_ra+t}")
        A(f"v_lshl_add_u32 v{v_ra+t}, v{j}, 8, v{v_ra+t}")
    A(f"s_cmp_lg_u32 s{s_wave}, 0")
    A("s_cbranch_scc1 L_nz")
    A(f"v_mov_b32 v{v_P}, 0")
    A(f"v_mov_b32 v{v_P+1}, 0")
    A(f"v_mov_b32 v{v_P+2}, {2*W}")
    A(f"v_mov_b32 v{v_P+3}, 0")
    A(f"ds_write_b128 v{v_prog}, {vr(v_P)}")
    A("L_nz:")
    if share or VP:
        A(f"s_cmp_ge_u32 s{s_wave}, 4")
        A("s_cbranch_scc1 L_yb")
        A(f"s_waitcnt vmcnt({8 + 4*VP}) lgkmcnt(0)")
        A("s_barrier")
        A("s_branch L_ob")
        A("L_yb:")
        if not share: A("s_waitcnt vmcnt(8)")
        A("s_barrier")
        for st in range(VP): issueV(st)
        A("L_ob:")
    else:
        A("s_waitcnt vmcnt(8) lgkmcnt(0)")
        A("s_barrier")
    A(f"s_cmp_lg_u32 s{s_wave}, {W-1}")
    A("s_cbranch_scc1 L_noann")
    A(f"s_waitcnt vmcnt({8 + 4*VP})")
    A(f"s_and_b32 s{s_tmp}, s2, 31")
    A(f"s_lshl_b32 s{s_tmp}, 1, s{s_tmp}")
    A(f"s_lshr_b32 s{s_tmp2}, s2, 5")
    A(f"s_lshl_b32 s{s_tmp2}, s{s_tmp2}, 5")
    A(f"v_mov_b32 v{v_D}, s{s_tmp}")
    A(f"v_mov_b32 v{v_D+1}, s{s_tmp2}")
    A("s_mov_b64 exec, 1")
    A(f"global_atomic_or v{v_D+1}, v{v_D}, s[{s_dbg}:{s_dbg+1}]")
    A("s_mov_b64 exec, -1")
    A("L_noann:")
    for mt in range(4):
        for t in range(4):
            A(f"ds_read_b128 {ar(a_om+16*mt+4*t)}, v{v_ra+t} offset:{4096*mt}")
    for t in range(4): A(f"v_add_u32 v{v_ra+t}, s{s_m0}, v{v_ra+t}")
    def ticket():
        return ["s_mov_b64 exec, 1", f"ds_add_rtn_u32 v{v_tk}, v{v_prog}, v{v_prog+1} offset:8", "s_mov_b64 exec, -1"]
    def rdK(slot, kb):
        return [f"ds_read_b128 {vr(kb+4*t)}, v{v_ra+t} offset:{4096*slot}" for t in range(4)]
    A(f"s_waitcnt vmcnt({4 + 4*VP})")
    for x in rdK(0, v_K) + (ticket() if KD == 2 else []): A(x)

    def scale_list(base):
        L = []
        for i in (0, 2):
            x, y = base + i, base + i + 1
            t, u = v_t, v_t + 2
            L += [f"v_lshlrev_b32 v{t}, 16, v{x}", f"v_and_b32 v{t+1}, 0xffff0000, v{x}",
                  f"v_lshlrev_b32 v{u}, 16, v{y}", f"v_and_b32 v{u+1}, 0xffff0000, v{y}"]
            if pk:
                L += [f"v_pk_mul_f32 {vr(t,2)}, {vr(t,2)}, s[{s_scale}:{s_scale+1}]",
                      f"v_pk_mul_f32 {vr(u,2)}, {vr(u,2)}, s[{s_scale}:{s_scale+1}]"]
            else:
                L += [f"v_mul_f32 v{r}, s{s_scale}, v{r}" for r in (t, t+1, u, u+1)]
            L += [f"v_cvt_pk_bf16_f32 v{x}, v{t}, v{t+1}", f"v_cvt_pk_bf16_f32 v{y}, v{u}, v{u+1}"]
        return L
    def Ms(kb, t):
        c = lambda d: "0" if t == 0 else vr(d)
        L = [] if dot else [f"v_mfma_f32_16x16x32_bf16 {vr(v_D2)}, {vr(kb+4*t)}, {vr(kb+4*t)}, {c(v_D2)}"]
        return L + [f"v_mfma_f32_16x16x32_bf16 {vr(v_D+4*mt)}, {ar(a_om+16*mt+4*t)}, {vr(kb+4*t)}, {c(v_D+4*mt)}" for mt in range(4)]
    def kfront(kb, do_scale, kc, mid):
        S = [scale_list(kb + 4 * t) if do_scale else [] for t in range(4)]
        if do_scale and ilv:
            for x in S[0] + mid: A(x)
            for t in range(1, 4):
                M, L = Ms(kb, t - 1), S[t]
                for x in L[:2]: A(x)
                L = L[2:]
                n, m = len(L), len(M)
                for k in range(m):
                    A(M[k])
                    for x in L[k * n // m:(k + 1) * n // m]: A(x)
            if dot:
                for x in dots(kb): A(x)
            else:
                A("s_nop 1")
            for x in Ms(kb, 3): A(x)
        else:
            for x in S[0] + mid + S[1] + S[2] + S[3]: A(x)
            if dot:
                for x in dots(kb): A(x)
            else:
                A("s_nop 1")
            for t in range(4):
                for x in Ms(kb, t): A(x)
        if dot:
            A(f"v_add_f32 v{v_p0}, v{v_p0}, v{v_p1}")
        else:
            A("s_nop 3")
            A(f"v_mul_f32 v{v_p0}, v{v_dm}, v{v_D2}")
            for r in range(1, 4): A(f"v_fmac_f32 v{v_p0}, v{v_dm+r}, v{v_D2+r}")
        A("s_nop 1")
        A(f"v_mfma_f32_16x16x4_f32 {vr(v_ksq)}, v{kc}, v{v_p0}, 0")
    def dots(kb):
        L = []
        for i in range(16):
            p = v_p0 if i % 2 == 0 else v_p1
            L.append(f"v_dot2_f32_bf16 v{p}, v{kb+i}, v{kb+i}, {'0' if i < 2 else 'v%d' % p}")
        return L

    if share:
        assert KD == 2
        A(f"s_cmp_lt_u32 s{s_wave}, 4")
        A("s_cbranch_scc1 L_doq")
        for x in ["s_waitcnt lgkmcnt(0)", f"v_readfirstlane_b32 s{s_id+2}, v{v_tk}", f"s_lshl_b32 s{s_ko}, s{s_id+2}, 12"] + dmaK(0): A(x)
        A(f"v_lshrrev_b32 v{v_t}, 4, v{v_lane}")
        A(f"v_lshlrev_b32 v{v_t}, 5, v{v_t}")
        A(f"v_add_u32 v{v_t}, {PQ}, v{v_t}")
        A("L_wq:")
        A(f"ds_read_b32 v{v_p0}, v{v_prog} offset:12")
        A("s_waitcnt lgkmcnt(0)")
        A(f"v_readfirstlane_b32 s{s_tmp}, v{v_p0}")
        A(f"s_cmp_lg_u32 s{s_tmp}, 0")
        A("s_cbranch_scc1 L_gq")
        A("s_sleep 1")
        A("s_branch L_wq")
        A("L_gq:")
        A(f"ds_read_b128 {vr(v_pq)}, v{v_t}")
        A(f"ds_read_b128 {vr(v_pq+4)}, v{v_t} offset:16")
        A(f"ds_read_b128 {vr(v_c0)}, v{v_prog} offset:{PQ+128-CTR}")
        A("s_waitcnt lgkmcnt(0)")
        A("s_branch L_qdone")
        A("L_doq:")
    kfront(qreg, True, v_one, ["s_waitcnt lgkmcnt(0)"] + ([f"v_readfirstlane_b32 s{s_id+2}, v{v_tk}",
                               f"s_lshl_b32 s{s_ko}, s{s_id+2}, 12"] + dmaK(0) if KD == 2 else ["s_nop 0"]))
    xs = [v_D + i for i in range(16)]
    for x in xs: A(f"v_cvt_pk_bf16_f32 v{x}, 0, v{x}")
    A(f"v_cvt_pk_bf16_f32 v{v_nh}, 0, v{v_ksq}")
    A(f"v_mul_f32 v{v_nh}, -0.5, v{v_nh}")
    A(f"s_mov_b32 s{s_tmp}, {hex(f2u(LOG2E))}")
    A(f"s_mov_b32 s{s_tmp2}, {hex(f2u(1e-6))}")
    for x in xs: A(f"v_add_f32 v{x}, v{x}, v{v_nh}")
    for x in xs: A(f"v_cvt_pk_bf16_f32 v{x}, 0, v{x}")
    for x in xs: A(f"v_mul_f32 v{x}, s{s_tmp}, v{x}")
    for x in xs: A(f"v_exp_f32 v{x}, v{x}")
    for x in xs: A(f"v_cvt_pk_bf16_f32 v{x}, 0, v{x}")
    for x in xs: A(f"v_mul_f32 v{x}, 0x3e000000, v{x}")
    for x in xs: A(f"v_add_f32 v{x}, s{s_tmp2}, v{x}")
    for x in xs: A(f"v_cvt_pk_bf16_f32 v{x}, 0, v{x}")
    A(f"v_add_f32 v{v_p0}, v{xs[0]}, v{xs[1]}")
    for x in xs[2:]: A(f"v_add_f32 v{v_p0}, v{v_p0}, v{x}")
    for x in xs: A(f"v_mul_f32 v{x}, 0x3e000000, v{x}")
    A(f"v_mul_f32 v{v_p0}, s{s_tmp2}, v{v_p0}")
    for i in range(8): A(f"v_cvt_pk_bf16_f32 v{v_pq+i}, v{xs[2*i]}, v{xs[2*i+1]}")
    A(f"v_mfma_f32_16x16x4_f32 {vr(v_c0)}, v{v_one}, v{v_p0}, 0")
    if share:
        A(f"s_cmp_lg_u32 s{s_wave}, 0")
        A("s_cbranch_scc1 L_qdone")
        A(f"v_lshlrev_b32 v{v_t}, 1, v{v_lane}")
        A(f"v_add_u32 v{v_t}, {PQ}, v{v_t}")
        A(f"s_mov_b64 exec, s[{s_wm}:{s_wm+1}]")
        A(f"ds_write_b128 v{v_t}, {vr(v_pq)}")
        A(f"ds_write_b128 v{v_t}, {vr(v_pq+4)} offset:16")
        A("s_mov_b64 exec, 1")
        A("s_nop 4")
        A(f"ds_write_b128 v{v_prog}, {vr(v_c0)} offset:{PQ+128-CTR}")
        A(f"ds_write_b32 v{v_prog}, v{v_prog+1} offset:12")
        A("s_mov_b64 exec, -1")
        A("L_qdone:")
    for r in range(4): A(f"v_mov_b32 v{v_acc+r}, 0")
    if trace:
        A(f"s_memrealtime s[{s_t0}:{s_t0+1}]\ns_waitcnt lgkmcnt(0)\nv_writelane_b32 v{v_ts}, s{s_t0}, 34\ns_mov_b32 s{s_cnt}, 0")

    def kphase(p):
        kb, kn = v_K + 16 * p, v_K + 16 * (1 - p)
        A(f"s_cmp_ge_u32 s{s_id}, {NT}")
        A("s_cbranch_scc1 L_kdone")
        A(f"s_waitcnt vmcnt({4*(KD-1)})")
        pre = rdK(1 - p, kn) + ticket()
        for x in pre: A(x)
        mid = ["s_waitcnt lgkmcnt(0)", f"v_readfirstlane_b32 s{s_id+NI}, v{v_tk}",
               f"s_lshl_b32 s{s_tmp}, s{s_id}, 6", f"s_min_u32 s{s_id+NI}, s{s_id+NI}, {NT}",
               f"s_lshl_b32 s{s_ko}, s{s_id+NI}, 12"]
        dm = dmaK(1 - p if KD == 2 else p)
        if VT:
            dm = [f"s_cmp_ge_u32 s{s_id+NI}, {NT}", f"s_cbranch_scc1 L_alt{p}", f"L_dma{p}:"] + dm + [f"L_back{p}:"]
        kfront(kb, mimic, v_kc, mid + ([] if late else dm))
        if late == 1:
            for x in dm: A(x)
        if mimic:
            for x in xs: A(f"v_cvt_pk_bf16_f32 v{x}, 0, v{x}")
            A(f"v_cvt_pk_bf16_f32 v{v_nh}, 0, v{v_ksq}")
            A(f"v_mul_f32 v{v_nh}, -0.5, v{v_nh}")
        else:
            A("s_nop 7\ns_nop 1")
        for h in range(2):
            ys = xs[8 * h:8 * h + 8]
            if mimic:
                if pk or pk2:
                    for i in range(0, 8, 2): A(f"v_pk_add_f32 {vr(ys[i],2)}, {vr(ys[i],2)}, {vr(v_nh,2)} op_sel_hi:[1,0]")
                else:
                    for x in ys: A(f"v_add_f32 v{x}, v{x}, v{v_nh}")
                for x in ys: A(f"v_cvt_pk_bf16_f32 v{x}, 0, v{x}")
                if pk or pk2:
                    for i in range(0, 8, 2): A(f"v_pk_mul_f32 {vr(ys[i],2)}, {vr(ys[i],2)}, s[{s_c1}:{s_c1+1}]")
                else:
                    for x in ys: A(f"v_mul_f32 v{x}, s{s_c1}, v{x}")
            else:
                for x in ys: A(f"v_fma_f32 v{x}, v{x}, s{s_c1}, v{v_ksq}")
            for x in ys: A(f"v_exp_f32 v{x}, v{x}")
            for i in range(4): A(f"v_cvt_pk_bf16_f32 v{v_P+4*h+i}, v{ys[2*i]}, v{ys[2*i+1]}")
        A(f"v_mfma_f32_16x16x32_bf16 {vr(v_w)}, {vr(v_P)}, {vr(v_pq)}, {vr(v_c0)}")
        A(f"v_add_u32 v{v_t}, s{s_tmp}, v{v_wa}")
        A(f"v_mfma_f32_16x16x32_bf16 {vr(v_w)}, {vr(v_P+4)}, {vr(v_pq+4)}, {vr(v_w)}")
        A(f"s_mov_b32 s{s_id}, s{s_id+1}")
        A(f"s_mov_b32 s{s_id+1}, s{s_id+2}")
        A(f"s_mov_b32 s{s_id+2}, s{s_id+3}")
        if late == 2:
            for x in dm: A(x)
        if trace:
            A(f"s_add_u32 s{s_cnt}, s{s_cnt}, 1")
            A("s_nop 3")
        else:
            A("s_nop 4")
        for r in range(4): A(f"v_cvt_pk_bf16_f32 v{v_w+r}, 0, v{v_w+r}")
        A(f"s_mov_b64 exec, s[{s_wm}:{s_wm+1}]")
        A(f"ds_write_b128 v{v_t}, {vr(v_w)}")
        A("s_mov_b64 exec, -1")
        for r in range(4): A(f"v_add_f32 v{v_den}, v{v_den}, v{v_w+r}")
    A(f"s_mov_b32 s{s_nv}, 0")
    A(".p2align 6")
    A("L_kloop:")
    kphase(0); kphase(1)
    A("s_branch L_kloop")
    if VT:
        for p in range(2):
            A(f"L_alt{p}:")
            A(f"s_add_u32 s{s_nv}, s{s_nv}, 1")
            for i in range(VT):
                A(f"s_cmp_lg_u32 s{s_nv}, {i+1}")
                A(f"s_cbranch_scc1 L_alt{p}_{i}")
                issueV(VP + i)
                A(f"s_branch L_back{p}")
                A(f"L_alt{p}_{i}:")
            A(f"s_branch L_dma{p}")
    A("L_kdone:")
    if trace:
        A(f"s_memrealtime s[{s_t0}:{s_t0+1}]\ns_waitcnt lgkmcnt(0)\nv_writelane_b32 v{v_ts}, s{s_t0}, 33\nv_writelane_b32 v{v_ts}, s{s_cnt}, 36")
    NV = NT // W
    wb = [v_w, v_w2]
    def vcore(k, st, wait):
        w, wn = wb[k % 2], wb[(k + 1) % 2]
        A("s_waitcnt lgkmcnt(0)")
        A(f"ds_read_b128 {vr(wn)}, v{v_wa} offset:{512*(k+1)}")
        for r in range(4):
            for q in range(4):
                A(f"v_perm_b32 v{v_A+4*r+q}, v{w+r}, v{w+r}, v{v_sel+q}")
        A(f"s_waitcnt vmcnt({wait})")
        for r in range(4):
            A(f"v_mfma_f32_16x16x32_bf16 {vr(v_acc)}, {vr(v_A+4*r)}, {ar(a_V+16*st+4*r)}, {vr(v_acc)}")
    if not (VP or VT):
        for st in range(VD): issueV(st)
    A(f"s_lshl_b32 s{s_tmp}, s{s_wave}, 6")
    A(f"v_add_u32 v{v_wa}, s{s_tmp}, v{v_wa}")
    A("s_waitcnt lgkmcnt(0)")
    A("s_barrier")
    A(f"ds_read_b128 {vr(wb[0])}, v{v_wa}")
    NP = VP + VT
    if NP:
        assert NP % 2 == 0 and NP >= VD and VT <= 3
        for k in range(NP):
            if k < VP: wait = 63 if VT else 4 * min(k, VD)
            else: wait = 4 * (NP - 1 - k) + 4 * (3 - VT) + 4 * min(k, VD)
            vcore(k, k, wait)
            if k < VD: issueV(k)
        A(f"v_add_u32 v{v_wa}, {512*NP}, v{v_wa}")
    NR = NV - NP
    U = VD if VD % 2 == 0 else 2 * VD
    assert NR % U == 0
    def vtile(k, last_group):
        rem = U - 1 - k
        vcore(k, k % VD, 4 * min(VD - 1, rem) if last_group else 4 * (VD - 1))
        if not last_group or rem >= VD: issueV(k % VD)
    A(f"s_mov_b32 s{s_cnt}, {NR // U - 1}")
    A(".p2align 6")
    A("L_vloop:")
    for k in range(U): vtile(k, False)
    A(f"v_add_u32 v{v_wa}, {512*U}, v{v_wa}")
    A("s_mov_b64 exec, 1")
    A(f"ds_add_u32 v{v_prog}, v{v_prog+1}")
    A("s_mov_b64 exec, -1")
    A(f"s_sub_u32 s{s_cnt}, s{s_cnt}, 1")
    A(f"s_cmp_lg_u32 s{s_cnt}, 0")
    A("s_cbranch_scc1 L_vloop")
    for k in range(U): vtile(k, True)
    ntrip_total = NR // U - 1

    if trace:
        A(f"s_memrealtime s[{s_tc}:{s_tc+1}]")
        A("s_waitcnt lgkmcnt(0)")
        A(f"v_writelane_b32 v{v_ts}, s{s_tc}, 35")
        A(f"s_mul_i32 s{s_tmp}, s2, {W}\ns_add_u32 s{s_tmp}, s{s_tmp}, s{s_wave}\ns_lshl_b32 s{s_tmp}, s{s_tmp}, 8")
        A(f"s_add_u32 s{s_tmp}, s{s_tmp}, {0x100000 + sbase}")
        A(f"v_lshl_add_u32 v{v_ts+1}, v{v_lane}, 2, s{s_tmp}")
        A(f"global_store_dword v{v_ts+1}, v{v_ts}, s[{s_ws}:{s_ws+1}]")
    A(f"v_mfma_f32_16x16x4_f32 {vr(v_ksq)}, v{v_one}, v{v_den}, 0")
    A(f"v_and_b32 v{v_t+3}, 15, v{v_lane}")
    chunk_of(v_t + 1, v_t + 3, v_t)
    A(f"v_lshrrev_b32 v{v_t+2}, 4, v{v_lane}")
    A(f"v_lshlrev_b32 v{v_t}, 5, v{v_t+1}")
    A(f"v_lshl_add_u32 v{v_t}, v{v_t+2}, 4, v{v_t}")
    A(f"s_lshl_b32 s{s_tmp}, s{s_wave}, 9")
    A(f"s_add_u32 s{s_tmp}, s{s_tmp}, {RED}")
    A(f"v_add_u32 v{v_t}, s{s_tmp}, v{v_t}")
    A(f"s_lshl_b32 s{s_tmp}, s{s_wave}, 2")
    A(f"s_add_u32 s{s_tmp}, s{s_tmp}, {RED+W*512}")
    A(f"v_mov_b32 v{v_t+3}, s{s_tmp}")
    A(f"s_mov_b32 exec_hi, 0")
    A(f"ds_write_b128 v{v_t}, {vr(v_acc)}")
    A(f"s_mov_b64 exec, 1")
    A(f"ds_write_b32 v{v_t+3}, v{v_ksq}")
    A(f"ds_add_u32 v{v_prog}, v{v_prog+1} offset:4")
    A(f"s_mov_b64 exec, -1")
    A(f"s_cmp_lg_u32 s{s_wave}, 0")
    A("s_cbranch_scc1 L_done")
    n0, n1, dn = v_D, v_D + 1, v_D + 2
    pn, pd = v_D + 4, v_D + 6
    A(f"v_lshlrev_b32 v{v_t}, 3, v{v_lane}")
    A(f"v_add_u32 v{v_t}, {RED}, v{v_t}")
    A(f"s_lshl_b32 s{s_tmp}, s2, 10")
    A(f"v_lshl_add_u32 v{v_t+1}, v{v_lane}, 4, s{s_tmp}")
    A(f"v_xor_b32 v{v_p0}, 1024, v{v_t+1}")
    A(f"s_lshr_b32 s{s_tmp2}, s2, 5")
    A(f"s_lshl_b32 s{s_tmp2}, s{s_tmp2}, 5")
    A(f"v_mov_b32 v{v_t+3}, s{s_tmp2}")
    A(f"s_xor_b32 s{s_sh}, s2, 1")
    A(f"s_and_b32 s{s_sh}, s{s_sh}, 31")
    A(f"s_mov_b32 s{s_have}, 0")
    A(f"v_mov_b32 v{v_P+4}, {RED+W*512}")
    A(f"v_mov_b32 v{v_D+3}, 1")
    A(f"s_lshl_b32 s{s_tmp}, s{s_head}, 8")
    A(f"v_lshl_add_u32 v{v_t+2}, v{v_lane}, 2, s{s_tmp}")
    def read_pok():
        A(f"global_load_dword v{v_P+2}, v{v_t+3}, s[{s_dbg}:{s_dbg+1}] sc0 sc1")
        A("s_waitcnt vmcnt(0)")
        A(f"v_readfirstlane_b32 s{s_pok}, v{v_P+2}")
        A(f"s_lshr_b32 s{s_pok}, s{s_pok}, s{s_sh}")
        A(f"s_and_b32 s{s_pok}, s{s_pok}, 1")
    def fetch_partner():
        A(f"global_load_dwordx4 {vr(pn)}, v{v_p0}, s[{s_ws}:{s_ws+1}] sc0 sc1")
        A("s_waitcnt vmcnt(0)")
        A(f"v_cmp_eq_u32 vcc, 1, v{pn+3}")
        A("s_nop 1")
        A("s_cmp_eq_u64 vcc, -1")
        A(f"s_cselect_b32 s{s_have}, 1, 0")
    read_pok()
    thr = W * ntrip_total - pollwin
    A("L_wait:")
    A(f"ds_read_b64 {vr(v_P,2)}, v{v_prog}")
    A("s_waitcnt lgkmcnt(0)")
    A(f"v_readfirstlane_b32 s{s_tmp}, v{v_P+1}")
    A(f"v_readfirstlane_b32 s{s_tmp2}, v{v_P}")
    A(f"s_cmp_ge_u32 s{s_tmp}, {W}")
    A("s_cbranch_scc1 L_all")
    A(f"s_cmp_lt_u32 s{s_tmp2}, {thr}")
    A("s_cbranch_scc1 L_longnap")
    A(f"s_cmp_gt_u32 s{s_pok}, s{s_have}")
    A("s_cbranch_scc0 L_nap")
    fetch_partner()
    A("s_branch L_wait")
    A("L_longnap:")
    A("s_sleep 8")
    A("L_nap:")
    A(f"s_sleep {nap}")
    A("s_branch L_wait")
    A("L_all:")
    for w in range(W): A(f"ds_read_b64 {vr(v_K+2*w,2)}, v{v_t} offset:{512*w}")
    for h in range(2): A(f"ds_read_b128 {vr(v_K+16+4*h)}, v{v_P+4} offset:{16*h}")
    A("s_waitcnt lgkmcnt(0)")
    A(f"v_add_f32 v{n0}, v{v_K}, v{v_K+2}")
    A(f"v_add_f32 v{n1}, v{v_K+1}, v{v_K+3}")
    A(f"v_add_f32 v{dn}, v{v_K+16}, v{v_K+17}")
    for w in range(2, W):
        A(f"v_add_f32 v{n0}, v{n0}, v{v_K+2*w}")
        A(f"v_add_f32 v{n1}, v{n1}, v{v_K+2*w+1}")
        A(f"v_add_f32 v{dn}, v{dn}, v{v_K+16+w}")
    A(f"s_cmp_lg_u32 s{s_have}, 0")
    A("s_cbranch_scc1 L_comb")
    A(f"global_store_dwordx4 v{v_t+1}, {vr(n0)}, s[{s_ws}:{s_ws+1}] sc0 sc1")
    A("s_waitcnt vmcnt(0)")
    A(f"s_cmp_lg_u32 s{s_pok}, 0")
    A("s_cbranch_scc1 L_look")
    read_pok()
    A(f"s_cmp_eq_u32 s{s_pok}, 0")
    A("s_cbranch_scc1 L_done")
    A("L_look:")
    fetch_partner()
    A("s_cbranch_scc0 L_done")
    A("L_comb:")
    A(f"v_add_f32 v{dn}, v{dn}, v{pd}")
    A(f"v_add_f32 v{n0}, v{n0}, v{pn}")
    A(f"v_add_f32 v{dn}, {hex(f2u(1e-6))}, v{dn}")
    A(f"v_add_f32 v{n1}, v{n1}, v{pn+1}")
    R = [[v_K + 8 * i + k for k in range(5)] for i in range(2)]
    sv = [f"s[{s_t0}:{s_t0+1}]", f"s[{s_t1}:{s_t1+1}]"]
    for i in range(2): A(f"v_div_scale_f32 v{R[i][0]}, s[{s_ta}:{s_ta+1}], v{dn}, v{dn}, v{n0+i}")
    for i in range(2): A(f"v_rcp_f32 v{R[i][1]}, v{R[i][0]}")
    for i in range(2): A(f"v_div_scale_f32 v{R[i][2]}, {sv[i]}, v{n0+i}, v{dn}, v{n0+i}")
    for i in range(2): a, b, c, d, e = R[i]; A(f"v_fma_f32 v{d}, -v{a}, v{b}, 1.0")
    for i in range(2): a, b, c, d, e = R[i]; A(f"v_fma_f32 v{b}, v{d}, v{b}, v{b}")
    for i in range(2): a, b, c, d, e = R[i]; A(f"v_mul_f32 v{d}, v{c}, v{b}")
    for i in range(2): a, b, c, d, e = R[i]; A(f"v_fma_f32 v{e}, -v{a}, v{d}, v{c}")
    for i in range(2): a, b, c, d, e = R[i]; A(f"v_fma_f32 v{d}, v{e}, v{b}, v{d}")
    for i in range(2): a, b, c, d, e = R[i]; A(f"v_fma_f32 v{a}, -v{a}, v{d}, v{c}")
    for i in range(2):
        a, b, c, d, e = R[i]
        A(f"s_mov_b64 vcc, {sv[i]}")
        A("s_nop 3")
        A(f"v_div_fmas_f32 v{a}, v{a}, v{b}, v{d}")
        A(f"v_div_fixup_f32 v{n0+i}, v{a}, v{dn}, v{n0+i}")
    A(f"v_cvt_pk_bf16_f32 v{n0}, v{n0}, v{n1}")
    A(f"global_store_dword v{v_t+2}, v{n0}, s[{s_out}:{s_out+1}]")
    A("L_done:")
    A("s_endpgm")
    if noload:
        first = next(i for i, l in enumerate(A.L) if l.startswith("L_kloop"))
        A.L = [("    s_nop 0" if (i > first and "buffer_load_dwordx4" in l) else l) for i, l in enumerate(A.L)]
    out = HEADER + f"; @launch grid=({NWG},1,1) block=({W*64},1,1) lds={lds}\n"
    out += f'.amdgcn_target "amdgcn-amd-amdhsa--gfx950"\n.text\n.globl {name}\n.p2align 8\n.type {name},@function\n{name}:\n'
    out += A.text()
    out += f""".section .rodata,"a"
.p2align 6
.amdhsa_kernel {name}
  .amdhsa_next_free_vgpr {total}
  .amdhsa_next_free_sgpr 64
  .amdhsa_accum_offset {acc_off}
  .amdhsa_group_segment_fixed_size 0
  .amdhsa_kernarg_size 56
  .amdhsa_user_sgpr_count 2
  .amdhsa_user_sgpr_kernarg_segment_ptr 1
  .amdhsa_system_sgpr_workgroup_id_x 1
  .amdhsa_float_denorm_mode_32 3
.end_amdhsa_kernel
"""
    if meta: out += META.format(name=name, vgpr=total, wg=W*64)
    return out, f"{NWG}:{W*64}:{lds}", total

if __name__ == "__main__":
    if sys.argv[1] == "final":
        kw = eval("dict(" + (sys.argv[3] if len(sys.argv) > 3 else "") + ")")
        t, g, tot = gen(**kw)
        open(sys.argv[2], "w").write(t)
        print(g, "regs", tot)
    else:
        specs = []
        for c in eval(open(sys.argv[1]).read()):
            t, g, tot = gen(meta=True, **c)
            n = c["name"]
            open(n + ".s", "w").write(t)
            subprocess.check_call(["clang", "-x", "assembler", "-target", "amdgcn-amd-amdhsa", "-mcpu=gfx950", n + ".s", "-o", n + ".co"])
            specs.append(f"{n}.co:{n}:{g}")
            print(n, "regs", tot, file=sys.stderr)
        open("specs3.txt", "w").write(" ".join(specs))
```

```python
import sys, subprocess
from gen import HEADER, META, G, vr, ar, f2u, SCALE, LOG2E

def gen(name="standalone__linear_kernel_rfa__decode_kernel", mimic=True, pk=False, flags="nt", meta=False,
        pm=3, pollwin=6, VD=2, ilv=True, trace=False, sbase=0, noload=False, nap=1, dot=False, ybar=True, vperm='id', KD=2, late=0, VP=0, share=False, pk2=False, VT=0, VL=None, mix=False, hmix=True):
    W, NWG, NT = 8, 256, 256
    A = G()
    sK, sV, sO, sQ = 8, 12, 16, 20
    s_wave, s_head, s_vo, s_cnt = 3, 24, 25, 26
    s_out, s_dbg, s_ws = 28, 30, 32
    s_scale, s_c1, s_tmp, s_tmp2 = 34, 36, 38, 39
    s_t0, s_t1, s_ta, s_tc = 40, 42, 44, 46
    s_sh, s_have, s_pok = 48, 49, 50
    s_m0 = 52
    s_id = 54
    s_ko = 58
    s_wm = 60
    v_lane, v_vo, v_den, v_p0 = 0, 1, 2, 3
    v_nh, v_one, v_kc, v_tk = 4, 6, 7, 8
    v_prog, v_wa = 10, 9
    v_da, v_ra, v_dm, v_sel = 12, 16, 20, 24
    v_pq, v_c0, v_acc = 28, 36, 40
    v_ksq, v_w, v_D2, v_t = 44, 48, 52, 56
    v_P, v_D = 60, 68
    v_A = v_D
    v_w2 = 84
    v_ts = 88
    v_p1 = 90
    v_K = 92
    nv = v_K + 32
    acc_off = (nv + 3) // 4 * 4
    a_om, a_V = 0, 64
    NVB = max(VD, VP + VT)
    s_nv, s_nk = 62, 63
    VPP = VP if VL is None else 0
    total = acc_off + 64 + 16 * NVB
    assert total <= 256
    OM, RING, WT = 0, 16384, 16384 + 65536
    RED = WT + 16384
    CTR = RED + W * 512 + 32
    PQ = CTR + 32
    lds = PQ + 160

    A(f"s_cmp_ge_u32 s2, {NWG}")
    A("s_cbranch_scc1 L_done")
    A("s_load_dwordx8 s[4:11], s[0:1], 0")
    A(f"s_load_dwordx4 s[{s_out}:{s_out+3}], s[0:1], 32")
    A(f"s_load_dwordx2 s[{s_ws}:{s_ws+1}], s[0:1], 48")
    A(f"v_lshrrev_b32 v{v_t}, 6, v0")
    A(f"v_and_b32 v{v_lane}, 63, v0")
    A(f"v_readfirstlane_b32 s{s_wave}, v{v_t}")
    j, g = v_t + 1, v_t + 2
    A(f"v_and_b32 v{j}, 15, v{v_lane}")
    A(f"v_lshrrev_b32 v{g}, 4, v{v_lane}")
    def chunk_of(dst, src, tmp):
        if vperm == 'id':
            A(f"v_mov_b32 v{dst}, v{src}")
        else:
            k = {'t4': 2, 't2': 1, 't8': 3}[vperm]
            A(f"v_and_b32 v{tmp}, {(1<<k)-1}, v{src}")
            A(f"v_lshlrev_b32 v{tmp}, {4-k}, v{tmp}")
            A(f"v_lshrrev_b32 v{dst}, {k}, v{src}")
            A(f"v_or_b32 v{dst}, v{dst}, v{tmp}")
    chunk_of(v_D, j, v_D + 1)
    A(f"v_lshlrev_b32 v{v_vo}, {8 if mix else 10}, v{g}")
    A(f"v_lshl_add_u32 v{v_vo}, v{v_D}, 4, v{v_vo}")
    A(f"v_lshlrev_b32 v{v_t+3}, 4, v{g}")
    if pm == 3:
        A(f"s_lshr_b32 s{s_tmp}, s2, 1")
        A(f"s_and_b32 s{s_tmp2}, s{s_tmp}, 1")
        A(f"s_xor_b32 s{s_tmp}, s{s_tmp}, s2")
        A(f"s_and_b32 s{s_tmp}, s{s_tmp}, 1")
        A(f"s_lshl_b32 s{s_tmp}, s{s_tmp}, 1")
        A(f"s_andn2_b32 s2, s2, 3")
        A(f"s_or_b32 s2, s2, s{s_tmp}")
        A(f"s_or_b32 s2, s2, s{s_tmp2}")
    A(f"s_lshr_b32 s{s_head}, s2, 1")
    A(f"s_lshl_b32 s{s_vo}, s{s_wave}, 12")
    A(f"s_lshl_b32 s{s_tmp2}, s2, 20")
    v_oa = v_P if (mix and hmix) else v_da
    for i in range(4):
        A(f"v_add_u32 v{v_oa+i}, {4*i}, v{g}")
        A(f"v_xor_b32 v{v_oa+i}, v{v_oa+i}, v{j}")
        A(f"v_lshlrev_b32 v{v_oa+i}, 4, v{v_oa+i}")
        A(f"v_lshl_add_u32 v{v_oa+i}, v{g}, 8, v{v_oa+i}")
    if mix and hmix:
        for i in range(2): A(f"v_mov_b32 v{v_da+i}, v{v_oa+i}")
        for h in range(2):
            d = v_da + 2 + h
            A(f"v_and_b32 v{d}, 4, v{j}")
            if h: A(f"v_xor_b32 v{d}, 4, v{d}")
            A(f"v_add3_u32 v{d}, v{d}, v{g}, 8")
            A(f"v_xor_b32 v{v_D+2}, v{d}, v{j}")
            A(f"v_lshlrev_b32 v{d}, 8, v{d}")
            A(f"v_lshl_add_u32 v{d}, v{v_D+2}, 4, v{d}")
            if h: A(f"v_subrev_u32 v{d}, 1024, v{d}")
    A(f"s_lshl_b32 s{s_m0}, s{s_wave}, 13")
    A(f"s_add_u32 s{s_m0}, s{s_m0}, {RING}")
    A(f"s_add_u32 s{s_m0+1}, s{s_m0}, 4096")
    if trace: A(f"s_memrealtime s[{s_t0}:{s_t0+1}]")
    A("s_waitcnt lgkmcnt(0)")
    if trace: A(f"v_writelane_b32 v{v_ts}, s{s_t0}, 32")
    A(f"""s_add_u32 s{sV}, s8, s{s_tmp2}
    s_addc_u32 s{sV+1}, s9, 0
    s_and_b32 s{sV+1}, s{sV+1}, 0xffff
    s_mov_b32 s{sV+2}, {NT*4096}
    s_mov_b32 s{sV+3}, 0x20000
    s_mov_b32 s{sO}, s10
    s_and_b32 s{sO+1}, s11, 0xffff
    s_mov_b32 s{sO+2}, 16384
    s_mov_b32 s{sO+3}, 0x20000
    s_add_u32 s{sK}, s6, s{s_tmp2}
    s_addc_u32 s{sK+1}, s7, 0
    s_and_b32 s{sK+1}, s{sK+1}, 0xffff
    s_mov_b32 s{sK+2}, {NT*4096}
    s_mov_b32 s{sK+3}, 0x20000
    s_mov_b32 s{sQ}, s4
    s_and_b32 s{sQ+1}, s5, 0xffff
    s_mov_b32 s{sQ+2}, 32768
    s_mov_b32 s{sQ+3}, 0x20000""")
    def dma(slot, srd, so):
        ld = lambda i, off: f"buffer_load_dwordx4 v{v_da+i}, s[{srd}:{srd+3}], s{so} offen offset:{off} {flags} lds"
        L = [f"s_mov_b32 m0, s{s_m0+slot}", "s_nop 0"]
        if mix and hmix:
            return L + [ld(0, 0), ld(1, 1024), "s_add_u32 m0, m0, 2048", "s_nop 0", ld(2, 0), ld(3, 1024)]
        return L + [ld(i, 1024 * i) for i in range(4)]
    def dmaK(slot): return dma(slot, sK, s_ko)
    def issueV(st):
        for r in range(4):
            A(f"buffer_load_dwordx4 {ar(a_V+16*st+4*r)}, v{v_vo}, s[{sV}:{sV+3}], s{s_vo} offen offset:{(1024 if mix else 256)*r} {flags}")
        A(f"s_add_u32 s{s_vo}, s{s_vo}, {W*4096}")
    A(f"s_cmp_lg_u32 s{s_wave}, {W-1}")
    A("s_cbranch_scc1 L_norst")
    for i in range(4): A(f"v_mov_b32 v{v_D+i}, 0")
    A(f"s_lshl_b32 s{s_tmp}, s2, 10")
    A(f"v_lshl_add_u32 v{v_D+4}, v{v_lane}, 4, s{s_tmp}")
    A(f"global_store_dwordx4 v{v_D+4}, {vr(v_D)}, s[{s_ws}:{s_ws+1}] sc0 sc1")
    A("L_norst:")
    A(f"s_cmp_ge_u32 s{s_wave}, 4")
    A("s_cbranch_scc1 L_noom")
    A(f"s_lshl_b32 s{s_tmp2}, s{s_wave}, 12")
    A(f"s_mov_b32 m0, s{s_tmp2}")
    A("s_nop 0")
    for i in range(4):
        A(f"buffer_load_dwordx4 v{v_oa+i}, s[{sO}:{sO+3}], s{s_tmp2} offen offset:{1024*i} lds")
    if not share: A("L_noom:")
    qreg = v_pq
    A(f"s_lshl_b32 s{s_tmp}, s{s_head}, 8")
    for t in range(4):
        A(f"buffer_load_dwordx4 {vr(qreg+4*t)}, v{v_t+3}, s[{sQ}:{sQ+3}], s{s_tmp} offen offset:{64*t}")
    if share: A("L_noom:")
    A(f"s_mov_b32 s{s_id}, s{s_wave}")
    A(f"s_add_u32 s{s_id+1}, s{s_wave}, {W}")
    for sl in range(2):
        A(f"s_lshl_b32 s{s_ko}, s{s_id+sl}, 12")
        for x in dmaK(sl): A(x)
    if VPP:
        A(f"s_cmp_ge_u32 s{s_wave}, 4")
        A("s_cbranch_scc1 L_novp")
        for st in range(VP): issueV(st)
        A("L_novp:")
    NI = 3 if KD == 2 else 2
    A(f"s_mov_b32 s{s_scale}, {hex(f2u(SCALE))}")
    A(f"s_mov_b32 s{s_scale+1}, {hex(f2u(SCALE))}")
    c1 = LOG2E if mimic else SCALE * LOG2E
    A(f"s_mov_b32 s{s_c1}, {hex(f2u(c1))}")
    A(f"s_mov_b32 s{s_c1+1}, {hex(f2u(c1))}")
    A(f"s_mov_b32 s{s_wm}, 0x00010001")
    A(f"s_mov_b32 s{s_wm+1}, 0x00010001")
    A(f"v_mov_b32 v{v_den}, 0")
    A(f"v_mov_b32 v{v_D}, 0x0c0c0302")
    A(f"v_mov_b32 v{v_D+1}, 0x03020c0c")
    for q in range(4):
        A(f"v_mov_b32 v{v_sel+q}, 0x0c0c0c0c")
        A(f"v_cmp_eq_u32 vcc, {2*q}, v{j}")
        A("s_nop 1")
        A(f"v_cndmask_b32 v{v_sel+q}, v{v_sel+q}, v{v_D}, vcc")
        A(f"v_cmp_eq_u32 vcc, {2*q+1}, v{j}")
        A("s_nop 1")
        A(f"v_cndmask_b32 v{v_sel+q}, v{v_sel+q}, v{v_D+1}, vcc")
    A(f"v_mov_b32 v{v_one}, 1.0")
    A(f"v_mov_b32 v{v_kc}, {hex(f2u(1.0 if mimic else -0.5*SCALE*SCALE*LOG2E))}")
    for r in range(4):
        A(f"v_lshl_add_u32 v{v_D+2}, v{g}, 2, {r}")
        A(f"v_cmp_eq_u32 vcc, v{v_D+2}, v{j}")
        A("s_nop 1")
        A(f"v_cndmask_b32 v{v_dm+r}, 0, v{v_one}, vcc")
    A(f"v_mov_b32 v{v_prog}, {CTR}")
    A(f"v_mov_b32 v{v_prog+1}, 1")
    A(f"v_lshlrev_b32 v{v_wa}, {2 if mix else 4}, v{g}")
    A(f"v_add_u32 v{v_wa}, {WT}, v{v_wa}")
    for t in range(4):
        A(f"v_add_u32 v{v_ra+t}, {4*t}, v{g}")
        A(f"v_xor_b32 v{v_ra+t}, v{v_ra+t}, v{j}")
        A(f"v_lshlrev_b32 v{v_ra+t}, 4, v{v_ra+t}")
        A(f"v_lshl_add_u32 v{v_ra+t}, v{j}, 8, v{v_ra+t}")
    A(f"s_cmp_lg_u32 s{s_wave}, 0")
    A("s_cbranch_scc1 L_nz")
    A(f"v_mov_b32 v{v_P}, 0")
    A(f"v_mov_b32 v{v_P+1}, 0")
    A(f"v_mov_b32 v{v_P+2}, {2*W}")
    A(f"v_mov_b32 v{v_P+3}, 0")
    A(f"ds_write_b128 v{v_prog}, {vr(v_P)}")
    A("L_nz:")
    if share or VPP:
        A(f"s_cmp_ge_u32 s{s_wave}, 4")
        A("s_cbranch_scc1 L_yb")
        A(f"s_waitcnt vmcnt({8 + 4*VPP}) lgkmcnt(0)")
        A("s_barrier")
        A("s_branch L_ob")
        A("L_yb:")
        if not share: A("s_waitcnt vmcnt(8)")
        A("s_barrier")
        for st in range(VPP): issueV(st)
        A("L_ob:")
    else:
        A("s_waitcnt vmcnt(8) lgkmcnt(0)")
        A("s_barrier")
    A(f"s_cmp_lg_u32 s{s_wave}, {W-1}")
    A("s_cbranch_scc1 L_noann")
    A(f"s_waitcnt vmcnt({8 + 4*VPP})")
    A(f"s_and_b32 s{s_tmp}, s2, 31")
    A(f"s_lshl_b32 s{s_tmp}, 1, s{s_tmp}")
    A(f"s_lshr_b32 s{s_tmp2}, s2, 5")
    A(f"s_lshl_b32 s{s_tmp2}, s{s_tmp2}, 5")
    A(f"v_mov_b32 v{v_D}, s{s_tmp}")
    A(f"v_mov_b32 v{v_D+1}, s{s_tmp2}")
    A("s_mov_b64 exec, 1")
    A(f"global_atomic_or v{v_D+1}, v{v_D}, s[{s_dbg}:{s_dbg+1}]")
    A("s_mov_b64 exec, -1")
    A("L_noann:")
    for mt in range(4):
        for t in range(4):
            A(f"ds_read_b128 {ar(a_om+16*mt+4*t)}, v{v_ra+t} offset:{4096*mt}")
    if mix and hmix:
        A(f"v_and_b32 v{v_D}, 15, v{v_lane}")
        A(f"v_cmp_lt_u32 vcc, 7, v{v_D}")
        A(f"v_and_b32 v{v_D}, 4, v{v_D}")
        A(f"v_lshlrev_b32 v{v_D}, 8, v{v_D}")
        for h in range(2):
            A(f"v_sub_u32 v{v_D+1+h}, {1024*h}, v{v_D}")
            A(f"v_cndmask_b32 v{v_D+1+h}, 0, v{v_D+1+h}, vcc")
        for t in range(4): A(f"v_add3_u32 v{v_ra+t}, v{v_ra+t}, v{v_D+1+(t&1)}, s{s_m0}")
    else:
        for t in range(4): A(f"v_add_u32 v{v_ra+t}, s{s_m0}, v{v_ra+t}")
    def ticket():
        return ["s_mov_b64 exec, 1", f"ds_add_rtn_u32 v{v_tk}, v{v_prog}, v{v_prog+1} offset:8", "s_mov_b64 exec, -1"]
    def rdK(slot, kb):
        return [f"ds_read_b128 {vr(kb+4*t)}, v{v_ra+t} offset:{4096*slot}" for t in range(4)]
    A(f"s_waitcnt vmcnt({4 + 4*VPP})")
    for x in rdK(0, v_K) + (ticket() if KD == 2 else []): A(x)

    def scale_list(base):
        L = []
        for i in (0, 2):
            x, y = base + i, base + i + 1
            t, u = v_t, v_t + 2
            L += [f"v_lshlrev_b32 v{t}, 16, v{x}", f"v_and_b32 v{t+1}, 0xffff0000, v{x}",
                  f"v_lshlrev_b32 v{u}, 16, v{y}", f"v_and_b32 v{u+1}, 0xffff0000, v{y}"]
            if pk:
                L += [f"v_pk_mul_f32 {vr(t,2)}, {vr(t,2)}, s[{s_scale}:{s_scale+1}]",
                      f"v_pk_mul_f32 {vr(u,2)}, {vr(u,2)}, s[{s_scale}:{s_scale+1}]"]
            else:
                L += [f"v_mul_f32 v{r}, s{s_scale}, v{r}" for r in (t, t+1, u, u+1)]
            L += [f"v_cvt_pk_bf16_f32 v{x}, v{t}, v{t+1}", f"v_cvt_pk_bf16_f32 v{y}, v{u}, v{u+1}"]
        return L
    def Ms(kb, t):
        c = lambda d: "0" if t == 0 else vr(d)
        L = [] if dot else [f"v_mfma_f32_16x16x32_bf16 {vr(v_D2)}, {vr(kb+4*t)}, {vr(kb+4*t)}, {c(v_D2)}"]
        return L + [f"v_mfma_f32_16x16x32_bf16 {vr(v_D+4*mt)}, {ar(a_om+16*mt+4*t)}, {vr(kb+4*t)}, {c(v_D+4*mt)}" for mt in range(4)]
    def kfront(kb, do_scale, kc, mid):
        S = [scale_list(kb + 4 * t) if do_scale else [] for t in range(4)]
        if do_scale and ilv:
            for x in S[0] + mid: A(x)
            for t in range(1, 4):
                M, L = Ms(kb, t - 1), S[t]
                for x in L[:2]: A(x)
                L = L[2:]
                n, m = len(L), len(M)
                for k in range(m):
                    A(M[k])
                    for x in L[k * n // m:(k + 1) * n // m]: A(x)
            if dot:
                for x in dots(kb): A(x)
            else:
                A("s_nop 1")
            for x in Ms(kb, 3): A(x)
        else:
            for x in S[0] + mid + S[1] + S[2] + S[3]: A(x)
            if dot:
                for x in dots(kb): A(x)
            else:
                A("s_nop 1")
            for t in range(4):
                for x in Ms(kb, t): A(x)
        if dot:
            A(f"v_add_f32 v{v_p0}, v{v_p0}, v{v_p1}")
        else:
            A("s_nop 3")
            A(f"v_mul_f32 v{v_p0}, v{v_dm}, v{v_D2}")
            for r in range(1, 4): A(f"v_fmac_f32 v{v_p0}, v{v_dm+r}, v{v_D2+r}")
        A("s_nop 1")
        A(f"v_mfma_f32_16x16x4_f32 {vr(v_ksq)}, v{kc}, v{v_p0}, 0")
    def dots(kb):
        L = []
        for i in range(16):
            p = v_p0 if i % 2 == 0 else v_p1
            L.append(f"v_dot2_f32_bf16 v{p}, v{kb+i}, v{kb+i}, {'0' if i < 2 else 'v%d' % p}")
        return L

    if share:
        assert KD == 2
        A(f"s_cmp_lt_u32 s{s_wave}, 4")
        A("s_cbranch_scc1 L_doq")
        for x in ["s_waitcnt lgkmcnt(0)", f"v_readfirstlane_b32 s{s_id+2}, v{v_tk}", f"s_lshl_b32 s{s_ko}, s{s_id+2}, 12"] + dmaK(0): A(x)
        A(f"v_lshrrev_b32 v{v_t}, 4, v{v_lane}")
        A(f"v_lshlrev_b32 v{v_t}, 5, v{v_t}")
        A(f"v_add_u32 v{v_t}, {PQ}, v{v_t}")
        A("L_wq:")
        A(f"ds_read_b32 v{v_p0}, v{v_prog} offset:12")
        A("s_waitcnt lgkmcnt(0)")
        A(f"v_readfirstlane_b32 s{s_tmp}, v{v_p0}")
        A(f"s_cmp_lg_u32 s{s_tmp}, 0")
        A("s_cbranch_scc1 L_gq")
        A("s_sleep 1")
        A("s_branch L_wq")
        A("L_gq:")
        A(f"ds_read_b128 {vr(v_pq)}, v{v_t}")
        A(f"ds_read_b128 {vr(v_pq+4)}, v{v_t} offset:16")
        A(f"ds_read_b128 {vr(v_c0)}, v{v_prog} offset:{PQ+128-CTR}")
        A("s_waitcnt lgkmcnt(0)")
        A("s_branch L_qdone")
        A("L_doq:")
    kfront(qreg, True, v_one, ["s_waitcnt lgkmcnt(0)"] + ([f"v_readfirstlane_b32 s{s_id+2}, v{v_tk}",
                               f"s_lshl_b32 s{s_ko}, s{s_id+2}, 12"] + dmaK(0) if KD == 2 else ["s_nop 0"]))
    xs = [v_D + i for i in range(16)]
    for x in xs: A(f"v_cvt_pk_bf16_f32 v{x}, 0, v{x}")
    A(f"v_cvt_pk_bf16_f32 v{v_nh}, 0, v{v_ksq}")
    A(f"v_mul_f32 v{v_nh}, -0.5, v{v_nh}")
    A(f"s_mov_b32 s{s_tmp}, {hex(f2u(LOG2E))}")
    A(f"s_mov_b32 s{s_tmp2}, {hex(f2u(1e-6))}")
    for x in xs: A(f"v_add_f32 v{x}, v{x}, v{v_nh}")
    for x in xs: A(f"v_cvt_pk_bf16_f32 v{x}, 0, v{x}")
    for x in xs: A(f"v_mul_f32 v{x}, s{s_tmp}, v{x}")
    for x in xs: A(f"v_exp_f32 v{x}, v{x}")
    for x in xs: A(f"v_cvt_pk_bf16_f32 v{x}, 0, v{x}")
    for x in xs: A(f"v_mul_f32 v{x}, 0x3e000000, v{x}")
    for x in xs: A(f"v_add_f32 v{x}, s{s_tmp2}, v{x}")
    for x in xs: A(f"v_cvt_pk_bf16_f32 v{x}, 0, v{x}")
    A(f"v_add_f32 v{v_p0}, v{xs[0]}, v{xs[1]}")
    for x in xs[2:]: A(f"v_add_f32 v{v_p0}, v{v_p0}, v{x}")
    for x in xs: A(f"v_mul_f32 v{x}, 0x3e000000, v{x}")
    A(f"v_mul_f32 v{v_p0}, s{s_tmp2}, v{v_p0}")
    for i in range(8): A(f"v_cvt_pk_bf16_f32 v{v_pq+i}, v{xs[2*i]}, v{xs[2*i+1]}")
    A(f"v_mfma_f32_16x16x4_f32 {vr(v_c0)}, v{v_one}, v{v_p0}, 0")
    if share:
        A(f"s_cmp_lg_u32 s{s_wave}, 0")
        A("s_cbranch_scc1 L_qdone")
        A(f"v_lshlrev_b32 v{v_t}, 1, v{v_lane}")
        A(f"v_add_u32 v{v_t}, {PQ}, v{v_t}")
        A(f"s_mov_b64 exec, s[{s_wm}:{s_wm+1}]")
        A(f"ds_write_b128 v{v_t}, {vr(v_pq)}")
        A(f"ds_write_b128 v{v_t}, {vr(v_pq+4)} offset:16")
        A("s_mov_b64 exec, 1")
        A("s_nop 4")
        A(f"ds_write_b128 v{v_prog}, {vr(v_c0)} offset:{PQ+128-CTR}")
        A(f"ds_write_b32 v{v_prog}, v{v_prog+1} offset:12")
        A("s_mov_b64 exec, -1")
        A("L_qdone:")
    for r in range(4): A(f"v_mov_b32 v{v_acc+r}, 0")
    if trace:
        A(f"s_memrealtime s[{s_t0}:{s_t0+1}]\ns_waitcnt lgkmcnt(0)\nv_writelane_b32 v{v_ts}, s{s_t0}, 34\ns_mov_b32 s{s_cnt}, 0")

    def kphase(p):
        kb, kn = v_K + 16 * p, v_K + 16 * (1 - p)
        A(f"s_cmp_ge_u32 s{s_id}, {NT}")
        A("s_cbranch_scc1 L_kdone")
        A(f"s_waitcnt vmcnt({4*(KD-1)})")
        pre = rdK(1 - p, kn) + ticket()
        for x in pre: A(x)
        mid = ["s_waitcnt lgkmcnt(0)", f"v_readfirstlane_b32 s{s_id+NI}, v{v_tk}",
               f"s_lshl_b32 s{s_tmp}, s{s_id}, 6", f"s_min_u32 s{s_id+NI}, s{s_id+NI}, {NT}",
               f"s_lshl_b32 s{s_ko}, s{s_id+NI}, 12"]
        dm = dmaK(1 - p if KD == 2 else p)
        if VT:
            dm = [f"s_cmp_ge_u32 s{s_id+NI}, {NT}", f"s_cbranch_scc1 L_alt{p}", f"L_dma{p}:"] + dm
            if VL is not None:
                dm += [f"s_add_u32 s{s_nk}, s{s_nk}, 1", f"s_max_i32 s{s_tmp2}, s{s_nk}, 0", f"s_min_u32 s{s_tmp2}, s{s_tmp2}, {VP}",
                       f"s_cmp_lt_u32 s{s_nv}, s{s_tmp2}", f"s_cbranch_scc1 L_pre{p}"]
            dm += [f"L_back{p}:"]
        kfront(kb, mimic, v_kc, mid + ([] if late else dm))
        if late == 1:
            for x in dm: A(x)
        if mimic:
            for x in xs: A(f"v_cvt_pk_bf16_f32 v{x}, 0, v{x}")
            A(f"v_cvt_pk_bf16_f32 v{v_nh}, 0, v{v_ksq}")
            A(f"v_mul_f32 v{v_nh}, -0.5, v{v_nh}")
        else:
            A("s_nop 7\ns_nop 1")
        for h in range(2):
            ys = xs[8 * h:8 * h + 8]
            if mimic:
                if pk or pk2:
                    for i in range(0, 8, 2): A(f"v_pk_add_f32 {vr(ys[i],2)}, {vr(ys[i],2)}, {vr(v_nh,2)} op_sel_hi:[1,0]")
                else:
                    for x in ys: A(f"v_add_f32 v{x}, v{x}, v{v_nh}")
                for x in ys: A(f"v_cvt_pk_bf16_f32 v{x}, 0, v{x}")
                if pk or pk2:
                    for i in range(0, 8, 2): A(f"v_pk_mul_f32 {vr(ys[i],2)}, {vr(ys[i],2)}, s[{s_c1}:{s_c1+1}]")
                else:
                    for x in ys: A(f"v_mul_f32 v{x}, s{s_c1}, v{x}")
            else:
                for x in ys: A(f"v_fma_f32 v{x}, v{x}, s{s_c1}, v{v_ksq}")
            for x in ys: A(f"v_exp_f32 v{x}, v{x}")
            for i in range(4): A(f"v_cvt_pk_bf16_f32 v{v_P+4*h+i}, v{ys[2*i]}, v{ys[2*i+1]}")
        A(f"v_mfma_f32_16x16x32_bf16 {vr(v_w)}, {vr(v_P)}, {vr(v_pq)}, {vr(v_c0)}")
        A(f"v_add_u32 v{v_t}, s{s_tmp}, v{v_wa}")
        A(f"v_mfma_f32_16x16x32_bf16 {vr(v_w)}, {vr(v_P+4)}, {vr(v_pq+4)}, {vr(v_w)}")
        A(f"s_mov_b32 s{s_id}, s{s_id+1}")
        A(f"s_mov_b32 s{s_id+1}, s{s_id+2}")
        A(f"s_mov_b32 s{s_id+2}, s{s_id+3}")
        if late == 2:
            for x in dm: A(x)
        if trace:
            A(f"s_add_u32 s{s_cnt}, s{s_cnt}, 1")
            A("s_nop 3")
        else:
            A("s_nop 4")
        for r in range(4): A(f"v_cvt_pk_bf16_f32 v{v_w+r}, 0, v{v_w+r}")
        A(f"s_mov_b64 exec, s[{s_wm}:{s_wm+1}]")
        if mix:
            A(f"ds_write2_b32 v{v_t}, v{v_w}, v{v_w+1} offset0:0 offset1:4")
            A(f"ds_write2_b32 v{v_t}, v{v_w+2}, v{v_w+3} offset0:8 offset1:12")
        else:
            A(f"ds_write_b128 v{v_t}, {vr(v_w)}")
        A("s_mov_b64 exec, -1")
        for r in range(4): A(f"v_add_f32 v{v_den}, v{v_den}, v{v_w+r}")
    A(f"s_mov_b32 s{s_nv}, {VPP}")
    if VL is not None: A(f"s_mov_b32 s{s_nk}, {-VL}")
    A(".p2align 6")
    A("L_kloop:")
    kphase(0); kphase(1)
    A("s_branch L_kloop")
    NP = VP + VT
    def issue_next(tag, back):
        for i in range(NP):
            if i < NP - 1:
                A(f"s_cmp_lg_u32 s{s_nv}, {i}")
                A(f"s_cbranch_scc1 {tag}_{i}")
            issueV(i)
            A(f"s_mov_b32 s{s_nv}, {i+1}")
            A(f"s_branch {back}")
            if i < NP - 1: A(f"{tag}_{i}:")
    if VT:
        for p in range(2):
            A(f"L_alt{p}:")
            A(f"s_cmp_ge_u32 s{s_nv}, {NP}")
            A(f"s_cbranch_scc0 L_pre{p}")
            for i in range(4): A(f"buffer_load_dword v{v_p1}, v{v_da}, s[{sK}:{sK+3}], s{s_ko} offen")
            A(f"s_branch L_back{p}")
            A(f"L_pre{p}:")
            issue_next(f"L_nx{p}", f"L_back{p}")
    A("L_kdone:")
    if trace:
        A(f"s_memrealtime s[{s_t0}:{s_t0+1}]\ns_waitcnt lgkmcnt(0)\nv_writelane_b32 v{v_ts}, s{s_t0}, 33\nv_writelane_b32 v{v_ts}, s{s_cnt}, 36")
    NV = NT // W
    wb = [v_w, v_w2]
    def vcore(k, st, wait):
        w, wn = wb[k % 2], wb[(k + 1) % 2]
        A("s_waitcnt lgkmcnt(0)")
        A(f"ds_read_b128 {vr(wn)}, v{v_wa} offset:{512*(k+1)}")
        for r in range(4):
            for q in range(4):
                A(f"v_perm_b32 v{v_A+4*r+q}, v{w+r}, v{w+r}, v{v_sel+q}")
        A(f"s_waitcnt vmcnt({wait})")
        for r in range(4):
            A(f"v_mfma_f32_16x16x32_bf16 {vr(v_acc)}, {vr(v_A+4*r)}, {ar(a_V+16*st+4*r)}, {vr(v_acc)}")
    if not (VP or VT):
        for st in range(VD): issueV(st)
    elif VT:
        A("L_fill:")
        A(f"s_cmp_ge_u32 s{s_nv}, {NP}")
        A("s_cbranch_scc1 L_full")
        issue_next("L_nxf", "L_fill")
        A("L_full:")
    if mix:
        assert VT and NP % 2 == 0
        def dmaV(slot): return dma(slot, sV, s_vo) + [f"s_add_u32 s{s_vo}, s{s_vo}, {W*4096}"]
        for x in dmaV(0) + dmaV(1): A(x)
        jj, gg = v_t, v_t + 1
        A(f"v_and_b32 v{jj}, 15, v{v_lane}")
        A(f"v_lshrrev_b32 v{gg}, 4, v{v_lane}")
        A(f"s_lshl_b32 s{s_tmp}, s{s_wave}, 6")
        A(f"s_add_u32 s{s_tmp}, s{s_tmp}, {WT}")
        A(f"v_lshl_add_u32 v{v_wa}, v{gg}, 4, s{s_tmp}")
        for r in range(4):
            d = v_ra + r
            A(f"v_add_u32 v{d}, {4*r}, v{gg}")
            A(f"v_xor_b32 v{d}, v{d}, v{jj}")
            A(f"v_lshlrev_b32 v{d}, 4, v{d}")
            A(f"v_lshl_add_u32 v{d}, v{gg}, 8, v{d}")
            if r < 2 or not hmix:
                A(f"s_add_u32 s{s_tmp}, s{s_m0}, {1024*r}")
                A(f"v_add_u32 v{d}, s{s_tmp}, v{d}")
            else:
                A(f"v_and_b32 v{v_t+2}, 4, v{jj}")
                A(f"v_lshlrev_b32 v{v_t+2}, 8, v{v_t+2}")
                A(f"s_add_u32 s{s_tmp}, s{s_m0}, 2048")
                A(f"v_add3_u32 v{d}, v{d}, v{v_t+2}, s{s_tmp}")
        A("s_waitcnt lgkmcnt(0)")
        A("s_barrier")
        A(f"ds_read_b128 {vr(wb[0])}, v{v_wa}")
        for k in range(NP): vcore(k, k, 4 * (NP - 1 - k) + 8)
        A(f"v_add_u32 v{v_wa}, {512*NP}, v{v_wa}")
        def vring(k, wait, refill):
            w, wn = wb[k % 2], wb[(k + 1) % 2]
            A(f"s_waitcnt vmcnt({wait}) lgkmcnt(0)")
            for x in rdK(k, v_K): A(x)
            A(f"ds_read_b128 {vr(wn)}, v{v_wa} offset:{512*(k+1)}")
            for r in range(4):
                for q in range(4):
                    A(f"v_perm_b32 v{v_A+4*r+q}, v{w+r}, v{w+r}, v{v_sel+q}")
            A("s_waitcnt lgkmcnt(1)")
            if refill:
                for x in dmaV(k): A(x)
            for r in range(4):
                A(f"v_mfma_f32_16x16x32_bf16 {vr(v_acc)}, {vr(v_A+4*r)}, {vr(v_K+4*r)}, {vr(v_acc)}")
        ntrip_total = (NV - NP) // 2 - 1
        A(f"s_mov_b32 s{s_cnt}, {ntrip_total}")
        A(".p2align 6")
        A("L_vloop:")
        vring(0, 4, True); vring(1, 4, True)
        A(f"v_add_u32 v{v_wa}, 1024, v{v_wa}")
        A("s_mov_b64 exec, 1")
        A(f"ds_add_u32 v{v_prog}, v{v_prog+1}")
        A("s_mov_b64 exec, -1")
        A(f"s_sub_u32 s{s_cnt}, s{s_cnt}, 1")
        A(f"s_cmp_lg_u32 s{s_cnt}, 0")
        A("s_cbranch_scc1 L_vloop")
        vring(0, 4, False); vring(1, 0, False)
    else:
        A(f"s_lshl_b32 s{s_tmp}, s{s_wave}, 6")
        A(f"v_add_u32 v{v_wa}, s{s_tmp}, v{v_wa}")
        A("s_waitcnt lgkmcnt(0)")
        A("s_barrier")
        A(f"ds_read_b128 {vr(wb[0])}, v{v_wa}")
        if NP:
            assert NP % 2 == 0 and NP >= VD
            for k in range(NP):
                vcore(k, k, 4 * (NP - 1 - k) + 4 * min(k, VD))
                if k < VD: issueV(k)
            A(f"v_add_u32 v{v_wa}, {512*NP}, v{v_wa}")
        NR = NV - NP
        U = VD if VD % 2 == 0 else 2 * VD
        assert NR % U == 0
        def vtile(k, last_group):
            rem = U - 1 - k
            vcore(k, k % VD, 4 * min(VD - 1, rem) if last_group else 4 * (VD - 1))
            if not last_group or rem >= VD: issueV(k % VD)
        A(f"s_mov_b32 s{s_cnt}, {NR // U - 1}")
        A(".p2align 6")
        A("L_vloop:")
        for k in range(U): vtile(k, False)
        A(f"v_add_u32 v{v_wa}, {512*U}, v{v_wa}")
        A("s_mov_b64 exec, 1")
        A(f"ds_add_u32 v{v_prog}, v{v_prog+1}")
        A("s_mov_b64 exec, -1")
        A(f"s_sub_u32 s{s_cnt}, s{s_cnt}, 1")
        A(f"s_cmp_lg_u32 s{s_cnt}, 0")
        A("s_cbranch_scc1 L_vloop")
        for k in range(U): vtile(k, True)
        ntrip_total = NR // U - 1

    if trace:
        A(f"s_memrealtime s[{s_tc}:{s_tc+1}]")
        A("s_waitcnt lgkmcnt(0)")
        A(f"v_writelane_b32 v{v_ts}, s{s_tc}, 35")
        A(f"s_mul_i32 s{s_tmp}, s2, {W}\ns_add_u32 s{s_tmp}, s{s_tmp}, s{s_wave}\ns_lshl_b32 s{s_tmp}, s{s_tmp}, 8")
        A(f"s_add_u32 s{s_tmp}, s{s_tmp}, {0x100000 + sbase}")
        A(f"v_lshl_add_u32 v{v_ts+1}, v{v_lane}, 2, s{s_tmp}")
        A(f"global_store_dword v{v_ts+1}, v{v_ts}, s[{s_ws}:{s_ws+1}]")
    A(f"v_mfma_f32_16x16x4_f32 {vr(v_ksq)}, v{v_one}, v{v_den}, 0")
    A(f"v_and_b32 v{v_t+3}, 15, v{v_lane}")
    chunk_of(v_t + 1, v_t + 3, v_t)
    A(f"v_lshrrev_b32 v{v_t+2}, 4, v{v_lane}")
    A(f"v_lshlrev_b32 v{v_t}, 5, v{v_t+1}")
    A(f"v_lshl_add_u32 v{v_t}, v{v_t+2}, 4, v{v_t}")
    A(f"s_lshl_b32 s{s_tmp}, s{s_wave}, 9")
    A(f"s_add_u32 s{s_tmp}, s{s_tmp}, {RED}")
    A(f"v_add_u32 v{v_t}, s{s_tmp}, v{v_t}")
    A(f"s_lshl_b32 s{s_tmp}, s{s_wave}, 2")
    A(f"s_add_u32 s{s_tmp}, s{s_tmp}, {RED+W*512}")
    A(f"v_mov_b32 v{v_t+3}, s{s_tmp}")
    A(f"s_mov_b32 exec_hi, 0")
    A(f"ds_write_b128 v{v_t}, {vr(v_acc)}")
    A(f"s_mov_b64 exec, 1")
    A(f"ds_write_b32 v{v_t+3}, v{v_ksq}")
    A(f"ds_add_u32 v{v_prog}, v{v_prog+1} offset:4")
    A(f"s_mov_b64 exec, -1")
    A(f"s_cmp_lg_u32 s{s_wave}, 0")
    A("s_cbranch_scc1 L_done")
    n0, n1, dn = v_D, v_D + 1, v_D + 2
    pn, pd = v_D + 4, v_D + 6
    A(f"v_lshlrev_b32 v{v_t}, 3, v{v_lane}")
    A(f"v_add_u32 v{v_t}, {RED}, v{v_t}")
    A(f"s_lshl_b32 s{s_tmp}, s2, 10")
    A(f"v_lshl_add_u32 v{v_t+1}, v{v_lane}, 4, s{s_tmp}")
    A(f"v_xor_b32 v{v_p0}, 1024, v{v_t+1}")
    A(f"s_lshr_b32 s{s_tmp2}, s2, 5")
    A(f"s_lshl_b32 s{s_tmp2}, s{s_tmp2}, 5")
    A(f"v_mov_b32 v{v_t+3}, s{s_tmp2}")
    A(f"s_xor_b32 s{s_sh}, s2, 1")
    A(f"s_and_b32 s{s_sh}, s{s_sh}, 31")
    A(f"s_mov_b32 s{s_have}, 0")
    A(f"v_mov_b32 v{v_P+4}, {RED+W*512}")
    A(f"v_mov_b32 v{v_D+3}, 1")
    A(f"s_lshl_b32 s{s_tmp}, s{s_head}, 8")
    A(f"v_lshl_add_u32 v{v_t+2}, v{v_lane}, 2, s{s_tmp}")
    def read_pok():
        A(f"global_load_dword v{v_P+2}, v{v_t+3}, s[{s_dbg}:{s_dbg+1}] sc0 sc1")
        A("s_waitcnt vmcnt(0)")
        A(f"v_readfirstlane_b32 s{s_pok}, v{v_P+2}")
        A(f"s_lshr_b32 s{s_pok}, s{s_pok}, s{s_sh}")
        A(f"s_and_b32 s{s_pok}, s{s_pok}, 1")
    def fetch_partner():
        A(f"global_load_dwordx4 {vr(pn)}, v{v_p0}, s[{s_ws}:{s_ws+1}] sc0 sc1")
        A("s_waitcnt vmcnt(0)")
        A(f"v_cmp_eq_u32 vcc, 1, v{pn+3}")
        A("s_nop 1")
        A("s_cmp_eq_u64 vcc, -1")
        A(f"s_cselect_b32 s{s_have}, 1, 0")
    read_pok()
    thr = W * ntrip_total - pollwin
    A("L_wait:")
    A(f"ds_read_b64 {vr(v_P,2)}, v{v_prog}")
    A("s_waitcnt lgkmcnt(0)")
    A(f"v_readfirstlane_b32 s{s_tmp}, v{v_P+1}")
    A(f"v_readfirstlane_b32 s{s_tmp2}, v{v_P}")
    A(f"s_cmp_ge_u32 s{s_tmp}, {W}")
    A("s_cbranch_scc1 L_all")
    A(f"s_cmp_lt_u32 s{s_tmp2}, {thr}")
    A("s_cbranch_scc1 L_longnap")
    A(f"s_cmp_gt_u32 s{s_pok}, s{s_have}")
    A("s_cbranch_scc0 L_nap")
    fetch_partner()
    A("s_branch L_wait")
    A("L_longnap:")
    A("s_sleep 8")
    A("L_nap:")
    A(f"s_sleep {nap}")
    A("s_branch L_wait")
    A("L_all:")
    for w in range(W): A(f"ds_read_b64 {vr(v_K+2*w,2)}, v{v_t} offset:{512*w}")
    for h in range(2): A(f"ds_read_b128 {vr(v_K+16+4*h)}, v{v_P+4} offset:{16*h}")
    A("s_waitcnt lgkmcnt(0)")
    A(f"v_add_f32 v{n0}, v{v_K}, v{v_K+2}")
    A(f"v_add_f32 v{n1}, v{v_K+1}, v{v_K+3}")
    A(f"v_add_f32 v{dn}, v{v_K+16}, v{v_K+17}")
    for w in range(2, W):
        A(f"v_add_f32 v{n0}, v{n0}, v{v_K+2*w}")
        A(f"v_add_f32 v{n1}, v{n1}, v{v_K+2*w+1}")
        A(f"v_add_f32 v{dn}, v{dn}, v{v_K+16+w}")
    A(f"s_cmp_lg_u32 s{s_have}, 0")
    A("s_cbranch_scc1 L_comb")
    A(f"global_store_dwordx4 v{v_t+1}, {vr(n0)}, s[{s_ws}:{s_ws+1}] sc0 sc1")
    A("s_waitcnt vmcnt(0)")
    A(f"s_cmp_lg_u32 s{s_pok}, 0")
    A("s_cbranch_scc1 L_look")
    read_pok()
    A(f"s_cmp_eq_u32 s{s_pok}, 0")
    A("s_cbranch_scc1 L_done")
    A("L_look:")
    fetch_partner()
    A("s_cbranch_scc0 L_done")
    A("L_comb:")
    A(f"v_add_f32 v{dn}, v{dn}, v{pd}")
    A(f"v_add_f32 v{n0}, v{n0}, v{pn}")
    A(f"v_add_f32 v{dn}, {hex(f2u(1e-6))}, v{dn}")
    A(f"v_add_f32 v{n1}, v{n1}, v{pn+1}")
    R = [[v_K + 8 * i + k for k in range(5)] for i in range(2)]
    sv = [f"s[{s_t0}:{s_t0+1}]", f"s[{s_t1}:{s_t1+1}]"]
    for i in range(2): A(f"v_div_scale_f32 v{R[i][0]}, s[{s_ta}:{s_ta+1}], v{dn}, v{dn}, v{n0+i}")
    for i in range(2): A(f"v_rcp_f32 v{R[i][1]}, v{R[i][0]}")
    for i in range(2): A(f"v_div_scale_f32 v{R[i][2]}, {sv[i]}, v{n0+i}, v{dn}, v{n0+i}")
    for i in range(2): a, b, c, d, e = R[i]; A(f"v_fma_f32 v{d}, -v{a}, v{b}, 1.0")
    for i in range(2): a, b, c, d, e = R[i]; A(f"v_fma_f32 v{b}, v{d}, v{b}, v{b}")
    for i in range(2): a, b, c, d, e = R[i]; A(f"v_mul_f32 v{d}, v{c}, v{b}")
    for i in range(2): a, b, c, d, e = R[i]; A(f"v_fma_f32 v{e}, -v{a}, v{d}, v{c}")
    for i in range(2): a, b, c, d, e = R[i]; A(f"v_fma_f32 v{d}, v{e}, v{b}, v{d}")
    for i in range(2): a, b, c, d, e = R[i]; A(f"v_fma_f32 v{a}, -v{a}, v{d}, v{c}")
    for i in range(2):
        a, b, c, d, e = R[i]
        A(f"s_mov_b64 vcc, {sv[i]}")
        A("s_nop 3")
        A(f"v_div_fmas_f32 v{a}, v{a}, v{b}, v{d}")
        A(f"v_div_fixup_f32 v{n0+i}, v{a}, v{dn}, v{n0+i}")
    A(f"v_cvt_pk_bf16_f32 v{n0}, v{n0}, v{n1}")
    A(f"global_store_dword v{v_t+2}, v{n0}, s[{s_out}:{s_out+1}]")
    A("L_done:")
    A("s_endpgm")
    if noload:
        first = next(i for i, l in enumerate(A.L) if l.startswith("L_kloop"))
        A.L = [("    s_nop 0" if (i > first and "buffer_load_dwordx4" in l) else l) for i, l in enumerate(A.L)]
    out = HEADER + f"; @launch grid=({NWG},1,1) block=({W*64},1,1) lds={lds}\n"
    out += f'.amdgcn_target "amdgcn-amd-amdhsa--gfx950"\n.text\n.globl {name}\n.p2align 8\n.type {name},@function\n{name}:\n'
    out += A.text()
    out += f""".section .rodata,"a"
.p2align 6
.amdhsa_kernel {name}
  .amdhsa_next_free_vgpr {total}
  .amdhsa_next_free_sgpr 64
  .amdhsa_accum_offset {acc_off}
  .amdhsa_group_segment_fixed_size 0
  .amdhsa_kernarg_size 56
  .amdhsa_user_sgpr_count 2
  .amdhsa_user_sgpr_kernarg_segment_ptr 1
  .amdhsa_system_sgpr_workgroup_id_x 1
  .amdhsa_float_denorm_mode_32 3
.end_amdhsa_kernel
"""
    if meta: out += META.format(name=name, vgpr=total, wg=W*64)
    return out, f"{NWG}:{W*64}:{lds}", total

if __name__ == "__main__":
    if sys.argv[1] == "final":
        kw = eval("dict(" + (sys.argv[3] if len(sys.argv) > 3 else "") + ")")
        t, g, tot = gen(**kw)
        open(sys.argv[2], "w").write(t)
        print(g, "regs", tot)
    else:
        specs = []
        for c in eval(open(sys.argv[1]).read()):
            t, g, tot = gen(meta=True, **c)
            n = c["name"]
            open(n + ".s", "w").write(t)
            subprocess.check_call(["clang", "-x", "assembler", "-target", "amdgcn-amd-amdhsa", "-mcpu=gfx950", n + ".s", "-o", n + ".co"])
            specs.append(f"{n}.co:{n}:{g}")
            print(n, "regs", tot, file=sys.stderr)
        open("specs3.txt", "w").write(" ".join(specs))
```

```python
import sys, subprocess
from gen import HEADER, META, G, vr, ar, f2u, SCALE, LOG2E

def gen(name="standalone__linear_kernel_rfa__decode_kernel", mimic=True, pk=False, flags="nt", meta=False,
        pm=3, pollwin=6, VD=2, ilv=True, trace=False, sbase=0, noload=False, nap=1, dot=False, ybar=True, vperm='id', KD=2, late=0, VP=0, share=False, pk2=False, VT=0, VL=None, mix=False, hmix=True, nobar=False, VY=0, alt=False):
    W, NWG, NT = 8, 256, 256
    A = G()
    sK, sV, sO, sQ = 8, 12, 16, 20
    s_wave, s_head, s_vo, s_cnt = 3, 24, 25, 26
    s_out, s_dbg, s_ws = 28, 30, 32
    s_scale, s_c1, s_tmp, s_tmp2 = 34, 36, 38, 39
    s_t0, s_t1, s_ta, s_tc = 40, 42, 44, 46
    s_sh, s_have, s_pok = 48, 49, 50
    s_m0 = 52
    s_id = 54
    s_ko, s_sl, s_st = 59, 64, 65
    s_wm = 60
    v_lane, v_vo, v_den, v_p0 = 0, 1, 2, 3
    v_nh, v_one, v_kc, v_tk = 4, 6, 7, 8
    v_prog, v_wa = 10, 9
    v_da, v_ra, v_dm, v_sel = 12, 16, 20, 24
    v_pq, v_c0, v_acc = 28, 36, 40
    v_ksq, v_w, v_D2, v_t = 44, 48, 52, 56
    v_P, v_D = 60, 68
    v_A = v_D
    v_w2 = 84
    v_ts = 88
    v_p1 = 90
    v_K = 92
    nv = v_K + 32
    acc_off = (nv + 3) // 4 * 4
    a_om, a_V = 0, 64
    NVB = max(VD, VP + VT)
    s_nv, s_nk = 62, 63
    VPP = VP if VL is None else 0
    total = acc_off + 64 + 16 * NVB
    assert total <= 256
    NS = max(KD, 2)
    OM, RING, WT = 0, 16384, 16384 + 8 * NS * 4096
    RED = WT + 16384
    CTR = RED + W * 512 + 32
    PQ = CTR + 32
    lds = PQ + 160

    A(f"s_cmp_ge_u32 s2, {NWG}")
    A("s_cbranch_scc1 L_done")
    A("s_load_dwordx8 s[4:11], s[0:1], 0")
    A(f"s_load_dwordx4 s[{s_out}:{s_out+3}], s[0:1], 32")
    A(f"s_load_dwordx2 s[{s_ws}:{s_ws+1}], s[0:1], 48")
    A(f"v_lshrrev_b32 v{v_t}, 6, v0")
    A(f"v_and_b32 v{v_lane}, 63, v0")
    A(f"v_readfirstlane_b32 s{s_wave}, v{v_t}")
    j, g = v_t + 1, v_t + 2
    A(f"v_and_b32 v{j}, 15, v{v_lane}")
    A(f"v_lshrrev_b32 v{g}, 4, v{v_lane}")
    def chunk_of(dst, src, tmp):
        if vperm == 'id':
            A(f"v_mov_b32 v{dst}, v{src}")
        else:
            k = {'t4': 2, 't2': 1, 't8': 3}[vperm]
            A(f"v_and_b32 v{tmp}, {(1<<k)-1}, v{src}")
            A(f"v_lshlrev_b32 v{tmp}, {4-k}, v{tmp}")
            A(f"v_lshrrev_b32 v{dst}, {k}, v{src}")
            A(f"v_or_b32 v{dst}, v{dst}, v{tmp}")
    chunk_of(v_D, j, v_D + 1)
    A(f"v_lshlrev_b32 v{v_vo}, {8 if mix else 10}, v{g}")
    A(f"v_lshl_add_u32 v{v_vo}, v{v_D}, 4, v{v_vo}")
    A(f"v_lshlrev_b32 v{v_t+3}, 4, v{g}")
    if pm == 3:
        A(f"s_lshr_b32 s{s_tmp}, s2, 1")
        A(f"s_and_b32 s{s_tmp2}, s{s_tmp}, 1")
        A(f"s_xor_b32 s{s_tmp}, s{s_tmp}, s2")
        A(f"s_and_b32 s{s_tmp}, s{s_tmp}, 1")
        A(f"s_lshl_b32 s{s_tmp}, s{s_tmp}, 1")
        A(f"s_andn2_b32 s2, s2, 3")
        A(f"s_or_b32 s2, s2, s{s_tmp}")
        A(f"s_or_b32 s2, s2, s{s_tmp2}")
    A(f"s_lshr_b32 s{s_head}, s2, 1")
    A(f"s_lshl_b32 s{s_vo}, s{s_wave}, 12")
    A(f"s_lshl_b32 s{s_tmp2}, s2, 20")
    v_oa = v_P if (mix and hmix) else v_da
    for i in range(4):
        A(f"v_add_u32 v{v_oa+i}, {4*i}, v{g}")
        A(f"v_xor_b32 v{v_oa+i}, v{v_oa+i}, v{j}")
        A(f"v_lshlrev_b32 v{v_oa+i}, 4, v{v_oa+i}")
        A(f"v_lshl_add_u32 v{v_oa+i}, v{g}, 8, v{v_oa+i}")
    if mix and hmix:
        for i in range(2): A(f"v_mov_b32 v{v_da+i}, v{v_oa+i}")
        for h in range(2):
            d = v_da + 2 + h
            A(f"v_and_b32 v{d}, 4, v{j}")
            if h: A(f"v_xor_b32 v{d}, 4, v{d}")
            A(f"v_add3_u32 v{d}, v{d}, v{g}, 8")
            A(f"v_xor_b32 v{v_D+2}, v{d}, v{j}")
            A(f"v_lshlrev_b32 v{d}, 8, v{d}")
            A(f"v_lshl_add_u32 v{d}, v{v_D+2}, 4, v{d}")
            if h: A(f"v_subrev_u32 v{d}, 1024, v{d}")
    A(f"s_mul_i32 s{s_m0}, s{s_wave}, {NS*4096}")
    A(f"s_add_u32 s{s_m0}, s{s_m0}, {RING}")
    A(f"s_add_u32 s{s_m0+1}, s{s_m0}, 4096")
    if trace: A(f"s_memrealtime s[{s_t0}:{s_t0+1}]")
    A("s_waitcnt lgkmcnt(0)")
    if trace: A(f"v_writelane_b32 v{v_ts}, s{s_t0}, 32")
    A(f"""s_add_u32 s{sV}, s8, s{s_tmp2}
    s_addc_u32 s{sV+1}, s9, 0
    s_and_b32 s{sV+1}, s{sV+1}, 0xffff
    s_mov_b32 s{sV+2}, {NT*4096}
    s_mov_b32 s{sV+3}, 0x20000
    s_mov_b32 s{sO}, s10
    s_and_b32 s{sO+1}, s11, 0xffff
    s_mov_b32 s{sO+2}, 16384
    s_mov_b32 s{sO+3}, 0x20000
    s_add_u32 s{sK}, s6, s{s_tmp2}
    s_addc_u32 s{sK+1}, s7, 0
    s_and_b32 s{sK+1}, s{sK+1}, 0xffff
    s_mov_b32 s{sK+2}, {NT*4096}
    s_mov_b32 s{sK+3}, 0x20000
    s_mov_b32 s{sQ}, s4
    s_and_b32 s{sQ+1}, s5, 0xffff
    s_mov_b32 s{sQ+2}, 32768
    s_mov_b32 s{sQ+3}, 0x20000""")
    def dma(slot, srd, so):
        ld = lambda i, off: f"buffer_load_dwordx4 v{v_da+i}, s[{srd}:{srd+3}], s{so} offen offset:{off} {flags} lds"
        L = [f"s_mov_b32 m0, s{s_m0+slot}" if slot in (0, 1) else
             (f"s_add_u32 m0, s{s_m0}, s{s_sl}" if slot == "dyn" else f"s_add_u32 m0, s{s_m0}, {4096*slot}"), "s_nop 0"]
        if mix and hmix:
            return L + [ld(0, 0), ld(1, 1024), "s_add_u32 m0, m0, 2048", "s_nop 0", ld(2, 0), ld(3, 1024)]
        return L + [ld(i, 1024 * i) for i in range(4)]
    def dmaK(slot): return dma(slot, sK, s_ko)
    def issueV(st):
        for r in range(4):
            A(f"buffer_load_dwordx4 {ar(a_V+16*st+4*r)}, v{v_vo}, s[{sV}:{sV+3}], s{s_vo} offen offset:{(1024 if mix else 256)*r} {flags}")
        A(f"s_add_u32 s{s_vo}, s{s_vo}, {W*4096}")
    A(f"s_cmp_lg_u32 s{s_wave}, {W-1}")
    A("s_cbranch_scc1 L_norst")
    for i in range(4): A(f"v_mov_b32 v{v_D+i}, 0")
    A(f"s_lshl_b32 s{s_tmp}, s2, 10")
    A(f"v_lshl_add_u32 v{v_D+4}, v{v_lane}, 4, s{s_tmp}")
    A(f"global_store_dwordx4 v{v_D+4}, {vr(v_D)}, s[{s_ws}:{s_ws+1}] sc0 sc1")
    A("L_norst:")
    A(f"s_cmp_ge_u32 s{s_wave}, 4")
    A("s_cbranch_scc1 L_noom")
    A(f"s_lshl_b32 s{s_tmp2}, s{s_wave}, 12")
    A(f"s_mov_b32 m0, s{s_tmp2}")
    A("s_nop 0")
    for i in range(4):
        A(f"buffer_load_dwordx4 v{v_oa+i}, s[{sO}:{sO+3}], s{s_tmp2} offen offset:{1024*i} lds")
    if not share: A("L_noom:")
    qreg = v_pq
    A(f"s_lshl_b32 s{s_tmp}, s{s_head}, 8")
    for t in range(4):
        A(f"buffer_load_dwordx4 {vr(qreg+4*t)}, v{v_t+3}, s[{sQ}:{sQ+3}], s{s_tmp} offen offset:{64*t}")
    if share: A("L_noom:")
    A(f"s_mov_b32 s{s_id}, s{s_wave}")
    A(f"s_add_u32 s{s_id+1}, s{s_wave}, {W}")
    if KD == 3: A(f"s_add_u32 s{s_id+2}, s{s_wave}, {2*W}")
    for sl in range(NS):
        A(f"s_lshl_b32 s{s_ko}, s{s_id+sl}, 12")
        for x in dmaK(sl): A(x)
    if VPP:
        A(f"s_cmp_ge_u32 s{s_wave}, 4")
        A("s_cbranch_scc1 L_novp")
        for st in range(VP): issueV(st)
        A("L_novp:")
    NI = KD + 1
    A(f"s_mov_b32 s{s_scale}, {hex(f2u(SCALE))}")
    A(f"s_mov_b32 s{s_scale+1}, {hex(f2u(SCALE))}")
    c1 = LOG2E if mimic else SCALE * LOG2E
    A(f"s_mov_b32 s{s_c1}, {hex(f2u(c1))}")
    A(f"s_mov_b32 s{s_c1+1}, {hex(f2u(c1))}")
    A(f"s_mov_b32 s{s_wm}, 0x00010001")
    A(f"s_mov_b32 s{s_wm+1}, 0x00010001")
    A(f"v_mov_b32 v{v_den}, 0")
    A(f"v_mov_b32 v{v_D}, 0x0c0c0302")
    A(f"v_mov_b32 v{v_D+1}, 0x03020c0c")
    for q in range(4):
        A(f"v_mov_b32 v{v_sel+q}, 0x0c0c0c0c")
        A(f"v_cmp_eq_u32 vcc, {2*q}, v{j}")
        A("s_nop 1")
        A(f"v_cndmask_b32 v{v_sel+q}, v{v_sel+q}, v{v_D}, vcc")
        A(f"v_cmp_eq_u32 vcc, {2*q+1}, v{j}")
        A("s_nop 1")
        A(f"v_cndmask_b32 v{v_sel+q}, v{v_sel+q}, v{v_D+1}, vcc")
    A(f"v_mov_b32 v{v_one}, 1.0")
    A(f"v_mov_b32 v{v_kc}, {hex(f2u(1.0 if mimic else -0.5*SCALE*SCALE*LOG2E))}")
    for r in range(4):
        A(f"v_lshl_add_u32 v{v_D+2}, v{g}, 2, {r}")
        A(f"v_cmp_eq_u32 vcc, v{v_D+2}, v{j}")
        A("s_nop 1")
        A(f"v_cndmask_b32 v{v_dm+r}, 0, v{v_one}, vcc")
    A(f"v_mov_b32 v{v_prog}, {CTR}")
    A(f"v_mov_b32 v{v_prog+1}, 1")
    A(f"v_lshlrev_b32 v{v_wa}, {2 if mix else 4}, v{g}")
    A(f"v_add_u32 v{v_wa}, {WT}, v{v_wa}")
    for t in range(4):
        A(f"v_add_u32 v{v_ra+t}, {4*t}, v{g}")
        A(f"v_xor_b32 v{v_ra+t}, v{v_ra+t}, v{j}")
        A(f"v_lshlrev_b32 v{v_ra+t}, 4, v{v_ra+t}")
        A(f"v_lshl_add_u32 v{v_ra+t}, v{j}, 8, v{v_ra+t}")
    if nobar:
        for i in range(4): A(f"v_mov_b32 v{v_D+4+i}, -1")
        A(f"s_lshl_b32 s{s_tmp}, s{s_wave}, 11")
        A(f"s_add_u32 s{s_tmp}, s{s_tmp}, {WT}")
        A(f"v_lshl_add_u32 v{v_D+8}, v{v_lane}, 4, s{s_tmp}")
        A(f"ds_write_b128 v{v_D+8}, {vr(v_D+4)}")
        A(f"ds_write_b128 v{v_D+8}, {vr(v_D+4)} offset:1024")
    A(f"s_cmp_lg_u32 s{s_wave}, 0")
    A("s_cbranch_scc1 L_nz")
    A(f"v_mov_b32 v{v_P}, 0")
    A(f"v_mov_b32 v{v_P+1}, 0")
    A(f"v_mov_b32 v{v_P+2}, {NS*W}")
    A(f"v_mov_b32 v{v_P+3}, 0")
    A(f"ds_write_b128 v{v_prog}, {vr(v_P)}")
    A("L_nz:")
    if share or VPP:
        A(f"s_cmp_ge_u32 s{s_wave}, 4")
        A("s_cbranch_scc1 L_yb")
        A(f"s_waitcnt vmcnt({4*NS + 4*VPP}) lgkmcnt(0)")
        A("s_barrier")
        A("s_branch L_ob")
        A("L_yb:")
        if not share: A("s_waitcnt vmcnt(8)")
        if nobar: A("s_waitcnt lgkmcnt(0)")
        A("s_barrier")
        for st in range(max(VPP, VY)): issueV(st)
        A("L_ob:")
    else:
        A("s_waitcnt vmcnt(8) lgkmcnt(0)")
        A("s_barrier")
    A(f"s_cmp_lg_u32 s{s_wave}, {W-1}")
    A("s_cbranch_scc1 L_noann")
    A(f"s_waitcnt vmcnt({4*NS + 4*max(VPP, VY)})")
    A(f"s_and_b32 s{s_tmp}, s2, 31")
    A(f"s_lshl_b32 s{s_tmp}, 1, s{s_tmp}")
    A(f"s_lshr_b32 s{s_tmp2}, s2, 5")
    A(f"s_lshl_b32 s{s_tmp2}, s{s_tmp2}, 5")
    A(f"v_mov_b32 v{v_D}, s{s_tmp}")
    A(f"v_mov_b32 v{v_D+1}, s{s_tmp2}")
    A("s_mov_b64 exec, 1")
    A(f"global_atomic_or v{v_D+1}, v{v_D}, s[{s_dbg}:{s_dbg+1}]")
    A("s_mov_b64 exec, -1")
    A("L_noann:")
    for mt in range(4):
        for t in range(4):
            A(f"ds_read_b128 {ar(a_om+16*mt+4*t)}, v{v_ra+t} offset:{4096*mt}")
    if mix and hmix:
        A(f"v_and_b32 v{v_D}, 15, v{v_lane}")
        A(f"v_cmp_lt_u32 vcc, 7, v{v_D}")
        A(f"v_and_b32 v{v_D}, 4, v{v_D}")
        A(f"v_lshlrev_b32 v{v_D}, 8, v{v_D}")
        for h in range(2):
            A(f"v_sub_u32 v{v_D+1+h}, {1024*h}, v{v_D}")
            A(f"v_cndmask_b32 v{v_D+1+h}, 0, v{v_D+1+h}, vcc")
        for t in range(4): A(f"v_add3_u32 v{v_ra+t}, v{v_ra+t}, v{v_D+1+(t&1)}, s{s_m0}")
    else:
        for t in range(4): A(f"v_add_u32 v{v_ra+t}, s{s_m0}, v{v_ra+t}")
    def ticket():
        return ["s_mov_b64 exec, 1", f"ds_add_rtn_u32 v{v_tk}, v{v_prog}, v{v_prog+1} offset:8", "s_mov_b64 exec, -1"]
    def rdK(slot, kb):
        return [f"ds_read_b128 {vr(kb+4*t)}, v{v_ra+t} offset:{4096*slot}" for t in range(4)]
    if VY > VPP:
        A(f"s_cmp_ge_u32 s{s_wave}, 4")
        A("s_cbranch_scc1 L_k0y")
        A(f"s_waitcnt vmcnt({4*NS - 4 + 4*VPP})")
        A("L_k0y:")
        A(f"s_waitcnt vmcnt({4*NS - 4 + 4*VY})")
    else:
        A(f"s_waitcnt vmcnt({4*NS - 4 + 4*VPP})")
    for x in rdK(0, v_K) + (ticket() if KD >= 2 else []): A(x)

    def scale_list(base):
        L = []
        for i in (0, 2):
            x, y = base + i, base + i + 1
            t, u = v_t, v_t + 2
            L += [f"v_lshlrev_b32 v{t}, 16, v{x}", f"v_and_b32 v{t+1}, 0xffff0000, v{x}",
                  f"v_lshlrev_b32 v{u}, 16, v{y}", f"v_and_b32 v{u+1}, 0xffff0000, v{y}"]
            if pk:
                L += [f"v_pk_mul_f32 {vr(t,2)}, {vr(t,2)}, s[{s_scale}:{s_scale+1}]",
                      f"v_pk_mul_f32 {vr(u,2)}, {vr(u,2)}, s[{s_scale}:{s_scale+1}]"]
            else:
                L += [f"v_mul_f32 v{r}, s{s_scale}, v{r}" for r in (t, t+1, u, u+1)]
            L += [f"v_cvt_pk_bf16_f32 v{x}, v{t}, v{t+1}", f"v_cvt_pk_bf16_f32 v{y}, v{u}, v{u+1}"]
        return L
    def Ms(kb, t):
        c = lambda d: "0" if t == 0 else vr(d)
        L = [] if dot else [f"v_mfma_f32_16x16x32_bf16 {vr(v_D2)}, {vr(kb+4*t)}, {vr(kb+4*t)}, {c(v_D2)}"]
        return L + [f"v_mfma_f32_16x16x32_bf16 {vr(v_D+4*mt)}, {ar(a_om+16*mt+4*t)}, {vr(kb+4*t)}, {c(v_D+4*mt)}" for mt in range(4)]
    def kfront(kb, do_scale, kc, mid):
        S = [scale_list(kb + 4 * t) if do_scale else [] for t in range(4)]
        if do_scale and ilv:
            for x in S[0] + mid: A(x)
            for t in range(1, 4):
                M, L = Ms(kb, t - 1), S[t]
                for x in L[:2]: A(x)
                L = L[2:]
                n, m = len(L), len(M)
                for k in range(m):
                    A(M[k])
                    for x in L[k * n // m:(k + 1) * n // m]: A(x)
            if dot:
                for x in dots(kb): A(x)
            else:
                A("s_nop 1")
            for x in Ms(kb, 3): A(x)
        else:
            for x in S[0] + mid + S[1] + S[2] + S[3]: A(x)
            if dot:
                for x in dots(kb): A(x)
            else:
                A("s_nop 1")
            for t in range(4):
                for x in Ms(kb, t): A(x)
        if dot:
            A(f"v_add_f32 v{v_p0}, v{v_p0}, v{v_p1}")
        else:
            A("s_nop 3")
            A(f"v_mul_f32 v{v_p0}, v{v_dm}, v{v_D2}")
            for r in range(1, 4): A(f"v_fmac_f32 v{v_p0}, v{v_dm+r}, v{v_D2+r}")
        A("s_nop 1")
        A(f"v_mfma_f32_16x16x4_f32 {vr(v_ksq)}, v{kc}, v{v_p0}, 0")
    def dots(kb):
        L = []
        for i in range(16):
            p = v_p0 if i % 2 == 0 else v_p1
            L.append(f"v_dot2_f32_bf16 v{p}, v{kb+i}, v{kb+i}, {'0' if i < 2 else 'v%d' % p}")
        return L

    if share:
        assert KD >= 2
        A(f"s_cmp_lt_u32 s{s_wave}, 4")
        A("s_cbranch_scc1 L_doq")
        for x in ["s_waitcnt lgkmcnt(0)", f"v_readfirstlane_b32 s{s_id+KD}, v{v_tk}", f"s_lshl_b32 s{s_ko}, s{s_id+KD}, 12"] + dmaK(0): A(x)
        A(f"v_lshrrev_b32 v{v_t}, 4, v{v_lane}")
        A(f"v_lshlrev_b32 v{v_t}, 5, v{v_t}")
        A(f"v_add_u32 v{v_t}, {PQ}, v{v_t}")
        A("L_wq:")
        A(f"ds_read_b32 v{v_p0}, v{v_prog} offset:12")
        A("s_waitcnt lgkmcnt(0)")
        A(f"v_readfirstlane_b32 s{s_tmp}, v{v_p0}")
        A(f"s_cmp_lg_u32 s{s_tmp}, 0")
        A("s_cbranch_scc1 L_gq")
        A("s_sleep 1")
        A("s_branch L_wq")
        A("L_gq:")
        A(f"ds_read_b128 {vr(v_pq)}, v{v_t}")
        A(f"ds_read_b128 {vr(v_pq+4)}, v{v_t} offset:16")
        A(f"ds_read_b128 {vr(v_c0)}, v{v_prog} offset:{PQ+128-CTR}")
        A("s_waitcnt lgkmcnt(0)")
        A("s_branch L_qdone")
        A("L_doq:")
    kfront(qreg, True, v_one, ["s_waitcnt lgkmcnt(0)"] + ([f"v_readfirstlane_b32 s{s_id+KD}, v{v_tk}",
                               f"s_lshl_b32 s{s_ko}, s{s_id+KD}, 12"] + dmaK(0) if KD >= 2 else ["s_nop 0"]))
    xs = [v_D + i for i in range(16)]
    for x in xs: A(f"v_cvt_pk_bf16_f32 v{x}, 0, v{x}")
    A(f"v_cvt_pk_bf16_f32 v{v_nh}, 0, v{v_ksq}")
    A(f"v_mul_f32 v{v_nh}, -0.5, v{v_nh}")
    A(f"s_mov_b32 s{s_tmp}, {hex(f2u(LOG2E))}")
    A(f"s_mov_b32 s{s_tmp2}, {hex(f2u(1e-6))}")
    for x in xs: A(f"v_add_f32 v{x}, v{x}, v{v_nh}")
    for x in xs: A(f"v_cvt_pk_bf16_f32 v{x}, 0, v{x}")
    for x in xs: A(f"v_mul_f32 v{x}, s{s_tmp}, v{x}")
    for x in xs: A(f"v_exp_f32 v{x}, v{x}")
    for x in xs: A(f"v_cvt_pk_bf16_f32 v{x}, 0, v{x}")
    for x in xs: A(f"v_mul_f32 v{x}, 0x3e000000, v{x}")
    for x in xs: A(f"v_add_f32 v{x}, s{s_tmp2}, v{x}")
    for x in xs: A(f"v_cvt_pk_bf16_f32 v{x}, 0, v{x}")
    A(f"v_add_f32 v{v_p0}, v{xs[0]}, v{xs[1]}")
    for x in xs[2:]: A(f"v_add_f32 v{v_p0}, v{v_p0}, v{x}")
    for x in xs: A(f"v_mul_f32 v{x}, 0x3e000000, v{x}")
    A(f"v_mul_f32 v{v_p0}, s{s_tmp2}, v{v_p0}")
    for i in range(8): A(f"v_cvt_pk_bf16_f32 v{v_pq+i}, v{xs[2*i]}, v{xs[2*i+1]}")
    A(f"v_mfma_f32_16x16x4_f32 {vr(v_c0)}, v{v_one}, v{v_p0}, 0")
    if share:
        A(f"s_cmp_lg_u32 s{s_wave}, 0")
        A("s_cbranch_scc1 L_qdone")
        A(f"v_lshlrev_b32 v{v_t}, 1, v{v_lane}")
        A(f"v_add_u32 v{v_t}, {PQ}, v{v_t}")
        A(f"s_mov_b64 exec, s[{s_wm}:{s_wm+1}]")
        A(f"ds_write_b128 v{v_t}, {vr(v_pq)}")
        A(f"ds_write_b128 v{v_t}, {vr(v_pq+4)} offset:16")
        A("s_mov_b64 exec, 1")
        A("s_nop 4")
        A(f"ds_write_b128 v{v_prog}, {vr(v_c0)} offset:{PQ+128-CTR}")
        A(f"ds_write_b32 v{v_prog}, v{v_prog+1} offset:12")
        A("s_mov_b64 exec, -1")
        A("L_qdone:")
    for r in range(4): A(f"v_mov_b32 v{v_acc+r}, 0")
    if trace:
        A(f"s_memrealtime s[{s_t0}:{s_t0+1}]\ns_waitcnt lgkmcnt(0)\nv_writelane_b32 v{v_ts}, s{s_t0}, 34\ns_mov_b32 s{s_cnt}, 0")

    def kphase(p):
        kb, kn = v_K + 16 * p, v_K + 16 * (1 - p)
        A(f"s_cmp_ge_u32 s{s_id}, {NT}")
        A("s_cbranch_scc1 L_kdone")
        A(f"s_waitcnt vmcnt({4*(KD-1)})")
        pre = rdK(1 - p if KD != 3 else 0, kn) + ticket()
        for x in pre: A(x)
        mid = ["s_waitcnt lgkmcnt(0)", f"v_readfirstlane_b32 s{s_id+NI}, v{v_tk}",
               f"s_lshl_b32 s{s_tmp}, s{s_id}, 6", f"s_min_u32 s{s_id+NI}, s{s_id+NI}, {NT}",
               f"s_lshl_b32 s{s_ko}, s{s_id+NI}, 12"]
        dm = dmaK("dyn" if KD == 3 else (1 - p if KD == 2 else p))
        if VT:
            dm = [f"s_cmp_ge_u32 s{s_id+NI}, {NT}", f"s_cbranch_scc1 L_alt{p}", f"L_dma{p}:"] + dm
            if VL is not None:
                dm += [f"s_add_u32 s{s_nk}, s{s_nk}, 1", f"s_max_i32 s{s_tmp2}, s{s_nk}, 0", f"s_min_u32 s{s_tmp2}, s{s_tmp2}, {VP}",
                       f"s_cmp_lt_u32 s{s_nv}, s{s_tmp2}", f"s_cbranch_scc1 L_pre{p}"]
            dm += [f"L_back{p}:"]
        if KD == 3:
            dm = dm + [f"s_cmp_eq_u32 s{s_sl}, 8192", f"s_cselect_b32 s{s_st}, {(-8192) & 0xffffffff}, s{s_tc}", f"s_add_u32 s{s_sl}, s{s_sl}, s{s_st}"] + \
                 [f"v_add_u32 v{v_ra+t}, s{s_st}, v{v_ra+t}" for t in range(4)]
        kfront(kb, mimic, v_kc, mid + ([] if late else dm))
        if late == 1:
            for x in dm: A(x)
        if mimic:
            for x in xs: A(f"v_cvt_pk_bf16_f32 v{x}, 0, v{x}")
            A(f"v_cvt_pk_bf16_f32 v{v_nh}, 0, v{v_ksq}")
            A(f"v_mul_f32 v{v_nh}, -0.5, v{v_nh}")
        else:
            A("s_nop 7\ns_nop 1")
        for h in range(2):
            ys = xs[8 * h:8 * h + 8]
            if mimic:
                if pk or pk2:
                    for i in range(0, 8, 2): A(f"v_pk_add_f32 {vr(ys[i],2)}, {vr(ys[i],2)}, {vr(v_nh,2)} op_sel_hi:[1,0]")
                else:
                    for x in ys: A(f"v_add_f32 v{x}, v{x}, v{v_nh}")
                for x in ys: A(f"v_cvt_pk_bf16_f32 v{x}, 0, v{x}")
                if pk or pk2:
                    for i in range(0, 8, 2): A(f"v_pk_mul_f32 {vr(ys[i],2)}, {vr(ys[i],2)}, s[{s_c1}:{s_c1+1}]")
                else:
                    for x in ys: A(f"v_mul_f32 v{x}, s{s_c1}, v{x}")
            else:
                for x in ys: A(f"v_fma_f32 v{x}, v{x}, s{s_c1}, v{v_ksq}")
            for x in ys: A(f"v_exp_f32 v{x}, v{x}")
            for i in range(4): A(f"v_cvt_pk_bf16_f32 v{v_P+4*h+i}, v{ys[2*i]}, v{ys[2*i+1]}")
        A(f"v_mfma_f32_16x16x32_bf16 {vr(v_w)}, {vr(v_P)}, {vr(v_pq)}, {vr(v_c0)}")
        A(f"v_add_u32 v{v_t}, s{s_tmp}, v{v_wa}")
        A(f"v_mfma_f32_16x16x32_bf16 {vr(v_w)}, {vr(v_P+4)}, {vr(v_pq+4)}, {vr(v_w)}")
        A(f"s_mov_b32 s{s_id}, s{s_id+1}")
        A(f"s_mov_b32 s{s_id+1}, s{s_id+2}")
        A(f"s_mov_b32 s{s_id+2}, s{s_id+3}")
        if KD == 3: A(f"s_mov_b32 s{s_id+3}, s{s_id+4}")
        if late == 2:
            for x in dm: A(x)
        if trace:
            A(f"s_add_u32 s{s_cnt}, s{s_cnt}, 1")
            A("s_nop 3")
        else:
            A("s_nop 4")
        for r in range(4): A(f"v_cvt_pk_bf16_f32 v{v_w+r}, 0, v{v_w+r}")
        A(f"s_mov_b64 exec, s[{s_wm}:{s_wm+1}]")
        if mix:
            A(f"ds_write2_b32 v{v_t}, v{v_w}, v{v_w+1} offset0:0 offset1:4")
            A(f"ds_write2_b32 v{v_t}, v{v_w+2}, v{v_w+3} offset0:8 offset1:12")
        else:
            A(f"ds_write_b128 v{v_t}, {vr(v_w)}")
        A("s_mov_b64 exec, -1")
        for r in range(4): A(f"v_add_f32 v{v_den}, v{v_den}, v{v_w+r}")
    A(f"s_cmp_ge_u32 s{s_wave}, 4")
    A(f"s_cselect_b32 s{s_nv}, {max(VPP, VY)}, {VPP}")
    if VL is not None: A(f"s_mov_b32 s{s_nk}, {-VL}")
    if KD == 3:
        A(f"s_mov_b32 s{s_sl}, 4096")
        A(f"s_mov_b32 s{s_tc}, 4096")
        for t in range(4): A(f"v_add_u32 v{v_ra+t}, 4096, v{v_ra+t}")
    A(".p2align 6")
    A("L_kloop:")
    kphase(0); kphase(1)
    A("s_branch L_kloop")
    NP = VP + VT
    def issue_next(tag, back):
        for i in range(NP):
            if i < NP - 1:
                A(f"s_cmp_lg_u32 s{s_nv}, {i}")
                A(f"s_cbranch_scc1 {tag}_{i}")
            issueV(i)
            A(f"s_mov_b32 s{s_nv}, {i+1}")
            A(f"s_branch {back}")
            if i < NP - 1: A(f"{tag}_{i}:")
    if VT:
        for p in range(2):
            A(f"L_alt{p}:")
            A(f"s_cmp_ge_u32 s{s_nv}, {NP}")
            A(f"s_cbranch_scc0 L_pre{p}")
            for i in range(4): A(f"buffer_load_dword v{v_p1}, v{v_da}, s[{sK}:{sK+3}], s{s_ko} offen")
            A(f"s_branch L_back{p}")
            A(f"L_pre{p}:")
            issue_next(f"L_nx{p}", f"L_back{p}")
    A("L_kdone:")
    if trace:
        A(f"s_memrealtime s[{s_t0}:{s_t0+1}]\ns_waitcnt lgkmcnt(0)\nv_writelane_b32 v{v_ts}, s{s_t0}, 33\nv_writelane_b32 v{v_ts}, s{s_cnt}, 36")
    NV = NT // W
    wb = [v_w, v_w2]
    chk = [0]
    def ready(w, k):
        if not nobar: return
        n = chk[0]; chk[0] += 1
        A(f"L_ck{n}:")
        A(f"v_or3_b32 v{v_t}, v{w}, v{w+1}, v{w+2}")
        A(f"v_or_b32 v{v_t}, v{v_t}, v{w+3}")
        A(f"v_lshlrev_b32 v{v_t}, 16, v{v_t}")
        A(f"v_cmp_ne_u32 vcc, 0, v{v_t}")
        A(f"s_cbranch_vccz L_ok{n}")
        A("s_sleep 1")
        A(f"ds_read_b128 {vr(w)}, v{v_wa} offset:{512*k}")
        A("s_waitcnt lgkmcnt(0)")
        A(f"s_branch L_ck{n}")
        A(f"L_ok{n}:")
    def vcore(k, st, wait):
        w, wn = wb[k % 2], wb[(k + 1) % 2]
        A("s_waitcnt lgkmcnt(0)")
        ready(w, k)
        A(f"ds_read_b128 {vr(wn)}, v{v_wa} offset:{512*(k+1)}")
        for r in range(4):
            for q in range(4):
                A(f"v_perm_b32 v{v_A+4*r+q}, v{w+r}, v{w+r}, v{v_sel+q}")
        A(f"s_waitcnt vmcnt({wait})")
        for r in range(4):
            A(f"v_mfma_f32_16x16x32_bf16 {vr(v_acc)}, {vr(v_A+4*r)}, {ar(a_V+16*st+4*r)}, {vr(v_acc)}")
    if not (VP or VT):
        for st in range(VD): issueV(st)
    elif VT:
        A("L_fill:")
        A(f"s_cmp_ge_u32 s{s_nv}, {NP}")
        A("s_cbranch_scc1 L_full")
        issue_next("L_nxf", "L_fill")
        A("L_full:")
    if mix:
        assert VT and NP % 2 == 0
        def dmaV(slot): return dma(slot, sV, s_vo) + [f"s_add_u32 s{s_vo}, s{s_vo}, {W*4096}"]
        for x in dmaV(0) + dmaV(1): A(x)
        jj, gg = v_t, v_t + 1
        A(f"v_and_b32 v{jj}, 15, v{v_lane}")
        A(f"v_lshrrev_b32 v{gg}, 4, v{v_lane}")
        A(f"s_lshl_b32 s{s_tmp}, s{s_wave}, 6")
        A(f"s_add_u32 s{s_tmp}, s{s_tmp}, {WT}")
        A(f"v_lshl_add_u32 v{v_wa}, v{gg}, 4, s{s_tmp}")
        for r in range(4):
            d = v_ra + r
            A(f"v_add_u32 v{d}, {4*r}, v{gg}")
            A(f"v_xor_b32 v{d}, v{d}, v{jj}")
            A(f"v_lshlrev_b32 v{d}, 4, v{d}")
            A(f"v_lshl_add_u32 v{d}, v{gg}, 8, v{d}")
            if r < 2 or not hmix:
                A(f"s_add_u32 s{s_tmp}, s{s_m0}, {1024*r}")
                A(f"v_add_u32 v{d}, s{s_tmp}, v{d}")
            else:
                A(f"v_and_b32 v{v_t+2}, 4, v{jj}")
                A(f"v_lshlrev_b32 v{v_t+2}, 8, v{v_t+2}")
                A(f"s_add_u32 s{s_tmp}, s{s_m0}, 2048")
                A(f"v_add3_u32 v{d}, v{d}, v{v_t+2}, s{s_tmp}")
        if not nobar:
            A("s_waitcnt lgkmcnt(0)")
            A("s_barrier")
        A(f"ds_read_b128 {vr(wb[0])}, v{v_wa}")
        for k in range(NP):
            vcore(k, k, 4 * (NP - 1 - k) + 8 + (4 * min(k, 2) if alt else 0))
            if alt and k < 2: issueV(k)
        A(f"v_add_u32 v{v_wa}, {512*NP}, v{v_wa}")
        def vring(k, wait, refill):
            w, wn = wb[k % 2], wb[(k + 1) % 2]
            A(f"s_waitcnt vmcnt({wait}) lgkmcnt(0)")
            ready(w, k)
            for x in rdK(k, v_K): A(x)
            A(f"ds_read_b128 {vr(wn)}, v{v_wa} offset:{512*(k+1)}")
            for r in range(4):
                for q in range(4):
                    A(f"v_perm_b32 v{v_A+4*r+q}, v{w+r}, v{w+r}, v{v_sel+q}")
            A("s_waitcnt lgkmcnt(1)")
            if refill:
                for x in dmaV(k): A(x)
            for r in range(4):
                A(f"v_mfma_f32_16x16x32_bf16 {vr(v_acc)}, {vr(v_A+4*r)}, {vr(v_K+4*r)}, {vr(v_acc)}")
        UG = 4 if alt else 2
        assert (NV - NP) % UG == 0
        ntrip_total = (NV - NP) // UG - 1
        A(f"s_mov_b32 s{s_cnt}, {ntrip_total}")
        A(".p2align 6")
        A("L_vloop:")
        if alt:
            vring(0, 12, True); vring(1, 12, True)
            vcore(2, 0, 12); issueV(0); vcore(3, 1, 12); issueV(1)
        else:
            vring(0, 4, True); vring(1, 4, True)
        A(f"v_add_u32 v{v_wa}, {512*UG}, v{v_wa}")
        A("s_mov_b64 exec, 1")
        A(f"ds_add_u32 v{v_prog}, v{v_prog+1}")
        A("s_mov_b64 exec, -1")
        A(f"s_sub_u32 s{s_cnt}, s{s_cnt}, 1")
        A(f"s_cmp_lg_u32 s{s_cnt}, 0")
        A("s_cbranch_scc1 L_vloop")
        if alt:
            vring(0, 12, False); vring(1, 8, False); vcore(2, 0, 4); vcore(3, 1, 0)
        else:
            vring(0, 4, False); vring(1, 0, False)
    else:
        A(f"s_lshl_b32 s{s_tmp}, s{s_wave}, 6")
        A(f"v_add_u32 v{v_wa}, s{s_tmp}, v{v_wa}")
        A("s_waitcnt lgkmcnt(0)")
        A("s_barrier")
        A(f"ds_read_b128 {vr(wb[0])}, v{v_wa}")
        if NP:
            assert NP % 2 == 0 and NP >= VD
            for k in range(NP):
                vcore(k, k, 4 * (NP - 1 - k) + 4 * min(k, VD))
                if k < VD: issueV(k)
            A(f"v_add_u32 v{v_wa}, {512*NP}, v{v_wa}")
        NR = NV - NP
        U = VD if VD % 2 == 0 else 2 * VD
        assert NR % U == 0
        def vtile(k, last_group):
            rem = U - 1 - k
            vcore(k, k % VD, 4 * min(VD - 1, rem) if last_group else 4 * (VD - 1))
            if not last_group or rem >= VD: issueV(k % VD)
        A(f"s_mov_b32 s{s_cnt}, {NR // U - 1}")
        A(".p2align 6")
        A("L_vloop:")
        for k in range(U): vtile(k, False)
        A(f"v_add_u32 v{v_wa}, {512*U}, v{v_wa}")
        A("s_mov_b64 exec, 1")
        A(f"ds_add_u32 v{v_prog}, v{v_prog+1}")
        A("s_mov_b64 exec, -1")
        A(f"s_sub_u32 s{s_cnt}, s{s_cnt}, 1")
        A(f"s_cmp_lg_u32 s{s_cnt}, 0")
        A("s_cbranch_scc1 L_vloop")
        for k in range(U): vtile(k, True)
        ntrip_total = NR // U - 1

    if trace:
        A(f"s_memrealtime s[{s_tc}:{s_tc+1}]")
        A("s_waitcnt lgkmcnt(0)")
        A(f"v_writelane_b32 v{v_ts}, s{s_tc}, 35")
        A(f"s_mul_i32 s{s_tmp}, s2, {W}\ns_add_u32 s{s_tmp}, s{s_tmp}, s{s_wave}\ns_lshl_b32 s{s_tmp}, s{s_tmp}, 8")
        A(f"s_add_u32 s{s_tmp}, s{s_tmp}, {0x100000 + sbase}")
        A(f"v_lshl_add_u32 v{v_ts+1}, v{v_lane}, 2, s{s_tmp}")
        A(f"global_store_dword v{v_ts+1}, v{v_ts}, s[{s_ws}:{s_ws+1}]")
    A(f"v_mfma_f32_16x16x4_f32 {vr(v_ksq)}, v{v_one}, v{v_den}, 0")
    A(f"v_and_b32 v{v_t+3}, 15, v{v_lane}")
    chunk_of(v_t + 1, v_t + 3, v_t)
    A(f"v_lshrrev_b32 v{v_t+2}, 4, v{v_lane}")
    A(f"v_lshlrev_b32 v{v_t}, 5, v{v_t+1}")
    A(f"v_lshl_add_u32 v{v_t}, v{v_t+2}, 4, v{v_t}")
    A(f"s_lshl_b32 s{s_tmp}, s{s_wave}, 9")
    A(f"s_add_u32 s{s_tmp}, s{s_tmp}, {RED}")
    A(f"v_add_u32 v{v_t}, s{s_tmp}, v{v_t}")
    A(f"s_lshl_b32 s{s_tmp}, s{s_wave}, 2")
    A(f"s_add_u32 s{s_tmp}, s{s_tmp}, {RED+W*512}")
    A(f"v_mov_b32 v{v_t+3}, s{s_tmp}")
    A(f"s_mov_b32 exec_hi, 0")
    A(f"ds_write_b128 v{v_t}, {vr(v_acc)}")
    A(f"s_mov_b64 exec, 1")
    A(f"ds_write_b32 v{v_t+3}, v{v_ksq}")
    A(f"ds_add_u32 v{v_prog}, v{v_prog+1} offset:4")
    A(f"s_mov_b64 exec, -1")
    A(f"s_cmp_lg_u32 s{s_wave}, 0")
    A("s_cbranch_scc1 L_done")
    n0, n1, dn = v_D, v_D + 1, v_D + 2
    pn, pd = v_D + 4, v_D + 6
    A(f"v_lshlrev_b32 v{v_t}, 3, v{v_lane}")
    A(f"v_add_u32 v{v_t}, {RED}, v{v_t}")
    A(f"s_lshl_b32 s{s_tmp}, s2, 10")
    A(f"v_lshl_add_u32 v{v_t+1}, v{v_lane}, 4, s{s_tmp}")
    A(f"v_xor_b32 v{v_p0}, 1024, v{v_t+1}")
    A(f"s_lshr_b32 s{s_tmp2}, s2, 5")
    A(f"s_lshl_b32 s{s_tmp2}, s{s_tmp2}, 5")
    A(f"v_mov_b32 v{v_t+3}, s{s_tmp2}")
    A(f"s_xor_b32 s{s_sh}, s2, 1")
    A(f"s_and_b32 s{s_sh}, s{s_sh}, 31")
    A(f"s_mov_b32 s{s_have}, 0")
    A(f"v_mov_b32 v{v_P+4}, {RED+W*512}")
    A(f"v_mov_b32 v{v_D+3}, 1")
    A(f"s_lshl_b32 s{s_tmp}, s{s_head}, 8")
    A(f"v_lshl_add_u32 v{v_t+2}, v{v_lane}, 2, s{s_tmp}")
    def read_pok():
        A(f"global_load_dword v{v_P+2}, v{v_t+3}, s[{s_dbg}:{s_dbg+1}] sc0 sc1")
        A("s_waitcnt vmcnt(0)")
        A(f"v_readfirstlane_b32 s{s_pok}, v{v_P+2}")
        A(f"s_lshr_b32 s{s_pok}, s{s_pok}, s{s_sh}")
        A(f"s_and_b32 s{s_pok}, s{s_pok}, 1")
    def fetch_partner():
        A(f"global_load_dwordx4 {vr(pn)}, v{v_p0}, s[{s_ws}:{s_ws+1}] sc0 sc1")
        A("s_waitcnt vmcnt(0)")
        A(f"v_cmp_eq_u32 vcc, 1, v{pn+3}")
        A("s_nop 1")
        A("s_cmp_eq_u64 vcc, -1")
        A(f"s_cselect_b32 s{s_have}, 1, 0")
    read_pok()
    thr = W * ntrip_total - pollwin
    A("L_wait:")
    A(f"ds_read_b64 {vr(v_P,2)}, v{v_prog}")
    A("s_waitcnt lgkmcnt(0)")
    A(f"v_readfirstlane_b32 s{s_tmp}, v{v_P+1}")
    A(f"v_readfirstlane_b32 s{s_tmp2}, v{v_P}")
    A(f"s_cmp_ge_u32 s{s_tmp}, {W}")
    A("s_cbranch_scc1 L_all")
    A(f"s_cmp_lt_u32 s{s_tmp2}, {thr}")
    A("s_cbranch_scc1 L_longnap")
    A(f"s_cmp_gt_u32 s{s_pok}, s{s_have}")
    A("s_cbranch_scc0 L_nap")
    fetch_partner()
    A("s_branch L_wait")
    A("L_longnap:")
    A("s_sleep 8")
    A("L_nap:")
    A(f"s_sleep {nap}")
    A("s_branch L_wait")
    A("L_all:")
    for w in range(W): A(f"ds_read_b64 {vr(v_K+2*w,2)}, v{v_t} offset:{512*w}")
    for h in range(2): A(f"ds_read_b128 {vr(v_K+16+4*h)}, v{v_P+4} offset:{16*h}")
    A("s_waitcnt lgkmcnt(0)")
    A(f"v_add_f32 v{n0}, v{v_K}, v{v_K+2}")
    A(f"v_add_f32 v{n1}, v{v_K+1}, v{v_K+3}")
    A(f"v_add_f32 v{dn}, v{v_K+16}, v{v_K+17}")
    for w in range(2, W):
        A(f"v_add_f32 v{n0}, v{n0}, v{v_K+2*w}")
        A(f"v_add_f32 v{n1}, v{n1}, v{v_K+2*w+1}")
        A(f"v_add_f32 v{dn}, v{dn}, v{v_K+16+w}")
    A(f"s_cmp_lg_u32 s{s_have}, 0")
    A("s_cbranch_scc1 L_comb")
    A(f"global_store_dwordx4 v{v_t+1}, {vr(n0)}, s[{s_ws}:{s_ws+1}] sc0 sc1")
    A("s_waitcnt vmcnt(0)")
    A(f"s_cmp_lg_u32 s{s_pok}, 0")
    A("s_cbranch_scc1 L_look")
    read_pok()
    A(f"s_cmp_eq_u32 s{s_pok}, 0")
    A("s_cbranch_scc1 L_done")
    A("L_look:")
    fetch_partner()
    A("s_cbranch_scc0 L_done")
    A("L_comb:")
    A(f"v_add_f32 v{dn}, v{dn}, v{pd}")
    A(f"v_add_f32 v{n0}, v{n0}, v{pn}")
    A(f"v_add_f32 v{dn}, {hex(f2u(1e-6))}, v{dn}")
    A(f"v_add_f32 v{n1}, v{n1}, v{pn+1}")
    R = [[v_K + 8 * i + k for k in range(5)] for i in range(2)]
    sv = [f"s[{s_t0}:{s_t0+1}]", f"s[{s_t1}:{s_t1+1}]"]
    for i in range(2): A(f"v_div_scale_f32 v{R[i][0]}, s[{s_ta}:{s_ta+1}], v{dn}, v{dn}, v{n0+i}")
    for i in range(2): A(f"v_rcp_f32 v{R[i][1]}, v{R[i][0]}")
    for i in range(2): A(f"v_div_scale_f32 v{R[i][2]}, {sv[i]}, v{n0+i}, v{dn}, v{n0+i}")
    for i in range(2): a, b, c, d, e = R[i]; A(f"v_fma_f32 v{d}, -v{a}, v{b}, 1.0")
    for i in range(2): a, b, c, d, e = R[i]; A(f"v_fma_f32 v{b}, v{d}, v{b}, v{b}")
    for i in range(2): a, b, c, d, e = R[i]; A(f"v_mul_f32 v{d}, v{c}, v{b}")
    for i in range(2): a, b, c, d, e = R[i]; A(f"v_fma_f32 v{e}, -v{a}, v{d}, v{c}")
    for i in range(2): a, b, c, d, e = R[i]; A(f"v_fma_f32 v{d}, v{e}, v{b}, v{d}")
    for i in range(2): a, b, c, d, e = R[i]; A(f"v_fma_f32 v{a}, -v{a}, v{d}, v{c}")
    for i in range(2):
        a, b, c, d, e = R[i]
        A(f"s_mov_b64 vcc, {sv[i]}")
        A("s_nop 3")
        A(f"v_div_fmas_f32 v{a}, v{a}, v{b}, v{d}")
        A(f"v_div_fixup_f32 v{n0+i}, v{a}, v{dn}, v{n0+i}")
    A(f"v_cvt_pk_bf16_f32 v{n0}, v{n0}, v{n1}")
    A(f"global_store_dword v{v_t+2}, v{n0}, s[{s_out}:{s_out+1}]")
    A("L_done:")
    A("s_endpgm")
    if noload:
        first = next(i for i, l in enumerate(A.L) if l.startswith("L_kloop"))
        A.L = [("    s_nop 0" if (i > first and "buffer_load_dwordx4" in l) else l) for i, l in enumerate(A.L)]
    out = HEADER + f"; @launch grid=({NWG},1,1) block=({W*64},1,1) lds={lds}\n"
    out += f'.amdgcn_target "amdgcn-amd-amdhsa--gfx950"\n.text\n.globl {name}\n.p2align 8\n.type {name},@function\n{name}:\n'
    out += A.text()
    out += f""".section .rodata,"a"
.p2align 6
.amdhsa_kernel {name}
  .amdhsa_next_free_vgpr {total}
  .amdhsa_next_free_sgpr 72
  .amdhsa_accum_offset {acc_off}
  .amdhsa_group_segment_fixed_size 0
  .amdhsa_kernarg_size 56
  .amdhsa_user_sgpr_count 2
  .amdhsa_user_sgpr_kernarg_segment_ptr 1
  .amdhsa_system_sgpr_workgroup_id_x 1
  .amdhsa_float_denorm_mode_32 3
.end_amdhsa_kernel
"""
    if meta: out += META.format(name=name, vgpr=total, wg=W*64)
    return out, f"{NWG}:{W*64}:{lds}", total

if __name__ == "__main__":
    if sys.argv[1] == "final":
        kw = eval("dict(" + (sys.argv[3] if len(sys.argv) > 3 else "") + ")")
        t, g, tot = gen(**kw)
        open(sys.argv[2], "w").write(t)
        print(g, "regs", tot)
    else:
        specs = []
        for c in eval(open(sys.argv[1]).read()):
            t, g, tot = gen(meta=True, **c)
            n = c["name"]
            open(n + ".s", "w").write(t)
            subprocess.check_call(["clang", "-x", "assembler", "-target", "amdgcn-amd-amdhsa", "-mcpu=gfx950", n + ".s", "-o", n + ".co"])
            specs.append(f"{n}.co:{n}:{g}")
            print(n, "regs", tot, file=sys.stderr)
        open("specs3.txt", "w").write(" ".join(specs))
```
